```python
import torch

def _softmax(x, axis=-1):
    return torch.softmax(x, dim=axis)
def _gelu(x):
    return torch.nn.functional.gelu(x, approximate="tanh")
def _silu(x):
    return torch.nn.functional.silu(x)
def _sigmoid(x):
    return torch.sigmoid(x)
def _layernorm(x, axis=-1, eps=1e-5):
    m = x.mean(dim=axis, keepdim=True)
    v = x.var(dim=axis, keepdim=True, unbiased=False)
    return (x - m) / torch.sqrt(v + eps)
def _scatter_add(tgt, idx, src, axis=0):
    return tgt.clone().index_add_(axis, idx, src)
def _segment_sum(src, seg, n):
    out = torch.zeros((n,) + src.shape[1:], dtype=src.dtype)
    return out.index_add_(0, seg, src)
def _pad(x, pw):
    flat = tuple(v for pair in reversed(pw) for v in pair)
    return torch.nn.functional.pad(x, flat)

kernel_name = 'sequential_preLN__sliding_local_dilated__glu_gated_bilinear__prompt'

def setup_inputs():

    _w = (lambda a: (lambda t: t.to(torch.bfloat16) if t.is_floating_point() else t)(torch.as_tensor(a)))
    def _A_setup():
        B, S, D = 1, 2048, 512
        return {
            "x": _w((lambda *s: torch.randn(*s, dtype=torch.bfloat16) * 0.05)(B, S, D)),
            "wqkv": _w((lambda *s: torch.randn(*s, dtype=torch.bfloat16) * 0.05)(D, 3 * D)),
            "wo": _w((lambda *s: torch.randn(*s, dtype=torch.bfloat16) * 0.05)(D, D)),
        }
    _A_in = _A_setup()

    def _B_setup():
        B, S, D, F = 1, 2048, 512, 1792
        return {
            "x": _w((lambda *s: torch.randn(*s, dtype=torch.bfloat16) * 0.05)(B, S, D)),
            "w_gate": _w((lambda *s: torch.randn(*s, dtype=torch.bfloat16) * 0.8)(D, F) * (D ** -0.5)),
            "w_up": _w((lambda *s: torch.randn(*s, dtype=torch.bfloat16) * 0.8)(D, F) * (D ** -0.5)),
            "w_down": _w((lambda *s: torch.randn(*s, dtype=torch.bfloat16) * 0.8)(F, D) * (F ** -0.5)),
        }
    _B_in = _B_setup()

    return {
        "A_x": _A_in["x"],
        "A_wqkv": _A_in["wqkv"],
        "A_wo": _A_in["wo"],
        "B_x": _B_in["x"],
        "B_w_gate": _B_in["w_gate"],
        "B_w_up": _B_in["w_up"],
        "B_w_down": _B_in["w_down"],
    }

def reference(A_x, A_wqkv, A_wo, B_x, B_w_gate, B_w_up, B_w_down):
    def _A_ref(x, wqkv, wo):
        B, S, D = x.shape
        H = 32; Dh = D // H
        W, dil = 8, 2
        qkv = (lambda x, *d: x.permute(*d))((x @ wqkv).reshape(B, S, 3, H, Dh), 2, 0, 3, 1, 4)
        q, k, v = qkv[0], qkv[1], qkv[2]
        scale = Dh ** -0.5
        pos = torch.arange(S)
        off = torch.arange(W) * dil
        idx = pos[:, None] - off[None, :]
        mask = idx >= 0
        idx_c = torch.where(mask, idx, 0).reshape(-1)
        kg = k[:, :, idx_c, :].reshape(B, H, S, W, Dh)
        vg = v[:, :, idx_c, :].reshape(B, H, S, W, Dh)
        logits = torch.einsum("bhsd,bhswd->bhsw", q, kg) * scale
        logits = torch.where(mask[None, None, :, :], logits, -1e9)
        attn = _softmax(logits, axis=-1)
        o = torch.einsum("bhsw,bhswd->bhsd", attn, vg)
        return (lambda x, *d: x.permute(*d))(o, 0, 2, 1, 3).reshape(B, S, D) @ wo

    def _B_ref(x, w_gate, w_up, w_down):
        g = torch.einsum("bsd,df->bsf", x, w_gate)
        u = torch.einsum("bsd,df->bsf", x, w_up)
        h = g * u
        return torch.einsum("bsf,fd->bsd", h, w_down)

    x = A_x
    h = x + _A_ref(_layernorm(x, axis=-1), A_wqkv, A_wo)
    h2 = h + _B_ref(_layernorm(h, axis=-1), B_w_gate, B_w_up, B_w_down)
    return h2
```

```python
import re

REG_RE = re.compile(r"^(-?)(?:abs\()?([vas])(?:(\d+)|\[(\d+):(\d+)\])\)?$")


def regs_of(tok):
    tok = tok.strip()
    if tok in ("vcc", "exec"):
        return {(tok, 0)}
    if tok in ("vcc_lo", "vcc_hi"):
        return {("vcc", 0)}
    if tok in ("exec_lo", "exec_hi"):
        return {("exec", 0)}
    if tok == "m0":
        return {("m0", 0)}
    m = REG_RE.match(tok)
    if not m:
        return set()
    kind = m.group(2)
    if m.group(3) is not None:
        return {(kind, int(m.group(3)))}
    return {(kind, i) for i in range(int(m.group(4)), int(m.group(5)) + 1)}


TRANS = ("v_exp_f32", "v_log_f32", "v_rcp_f32", "v_rsq_f32", "v_sqrt_f32", "v_sin_f32", "v_cos_f32")


class Ins:
    def __init__(self, text):
        self.text = text
        t = text.split(";")[0].strip()
        self.is_label = t.endswith(":")
        self.is_dir = t.startswith(".")
        self.op = t.split()[0] if t else ""
        rest = t[len(self.op):].strip()
        ops = []
        if rest and not self.is_label and not self.is_dir:
            parts = [p.strip() for p in rest.split(",")]
            out = []
            for i, p in enumerate(parts):
                toks = p.split()
                if not toks:
                    continue
                out.append(toks[0])
                if len(toks) > 1:
                    break
            ops = out
        self.ops = ops
        self.mods = rest
        op = self.op
        self.is_mfma = op.startswith("v_mfma")
        self.is_valu = op.startswith("v_") and not self.is_mfma
        self.is_dot = op.startswith("v_dot")
        self.is_trans = any(op.startswith(x) for x in TRANS)
        self.is_dpp = "_dpp" in op or "row_" in rest or "quad_perm" in rest or "wave_sh" in rest
        self.is_perm = op.startswith("v_permlane")
        self.is_vmem = op.startswith("buffer_") or op.startswith("global_")
        self.is_ds = op.startswith("ds_")
        self.is_salu = op.startswith("s_")
        self.is_lds_dma = self.is_vmem and re.search(r"\blds\b", rest) is not None
        self.is_store = self.is_vmem and ("store" in op or "atomic" in op)
        self.is_branch = op.startswith("s_branch") or op.startswith("s_cbranch") or op.startswith("s_setpc") or op == "s_endpgm"
        self.passes = 0
        if self.is_mfma:
            self.passes = 8 if "32x32" in op else 4
        d, u = set(), set()
        R = [regs_of(o) for o in ops]
        if self.is_label or self.is_dir or not ops:
            pass
        elif self.is_vmem:
            if self.is_lds_dma:
                for r in R:
                    u |= r
                u |= {("m0", 0)}
            elif self.is_store:
                for r in R:
                    u |= r
                if "atomic" in op and re.search(r"\bsc0\b", rest):
                    d |= R[0]
            elif op in ("buffer_inv", "buffer_wbl2"):
                pass
            else:
                d |= R[0]
                for r in R[1:]:
                    u |= r
        elif self.is_ds:
            if "write" in op or "add" in op:
                for r in R:
                    u |= r
            else:
                d |= R[0]
                for r in R[1:]:
                    u |= r
        elif self.is_perm and "swap" in op:
            d |= R[0] | R[1]
            u |= R[0] | R[1]
        elif op.startswith("s_cmp") or op.startswith("s_waitcnt") or op.startswith("s_nop") or self.is_branch or op in ("s_barrier", "s_sleep", "s_setprio"):
            for r in R:
                u |= r
        else:
            d |= R[0]
            start = 1
            if op.startswith(("v_add_co", "v_sub_co", "v_addc_co", "v_subb_co", "v_div_scale", "v_mad_u64")):
                d |= R[1]
                start = 2
            for r in R[start:]:
                u |= r
            if op.startswith(("v_fmac", "v_dot2c", "v_pk_fmac", "s_addk", "s_mulk", "v_writelane")) or self.is_dpp:
                u |= R[0]
            if "saveexec" in op:
                d |= {("exec", 0)}
                u |= {("exec", 0)}
            if op.startswith("v_cndmask") and len(ops) == 3:
                u |= {("vcc", 0)}
        self.defs, self.uses = d, u
        if self.is_mfma:
            self.srcA, self.srcB, self.srcC = R[1], R[2], R[3] if len(R) > 3 else set()
        self.store_data = set()
        if self.is_store and ("x3" in op or "x4" in op):
            self.store_data = R[0] if op.startswith("buffer_") else R[1]

    def states(self):
        if self.is_label or self.is_dir or not self.op:
            return 0
        if self.op == "s_nop":
            return int(self.ops[0], 0) + 1
        return 1


def vg(s):
    return {r for r in s if r[0] in ("v", "a")}


def sg(s):
    return {r for r in s if r[0] in ("s", "vcc")}


def need(p, c):
    n = 0
    if p.is_valu:
        w = vg(p.defs)
        if w:
            if c.is_mfma and w & c.uses:
                n = max(n, 2)
            if c.is_dpp and w & c.uses:
                n = max(n, 2)
            if c.is_perm and w & c.uses:
                n = max(n, 2)
            if c.op.startswith(("v_readlane", "v_readfirstlane")) and w & c.uses:
                n = max(n, 1)
            if p.is_trans and c.is_valu and w & c.uses:
                n = max(n, 1)
            if p.is_trans and (c.is_vmem or c.is_ds) and w & c.uses:
                n = max(n, 1)
            if p.is_dot and (w & (c.uses | c.defs)):
                same_c = c.op == p.op and not (w & set().union(*[regs_of(o) for o in c.ops[1:3]]))
                if not same_c:
                    n = max(n, 3)
            if ("op_sel" in p.mods and not p.op.startswith("v_pk")) or "sdwa" in p.op:
                if c.is_valu and w & (c.uses | c.defs):
                    n = max(n, 1)
        ws = sg(p.defs)
        if ws:
            if c.is_vmem and ws & c.uses:
                n = max(n, 5)
            if c.is_valu and ws & c.uses:
                n = max(n, 4 if c.op.startswith(("v_readlane", "v_writelane")) else 2)
            if c.is_salu and ws & c.uses:
                n = max(n, 1)
        if ("exec", 0) in p.defs:
            if c.is_dpp:
                n = max(n, 5)
            if c.is_mfma or c.is_perm or c.op.startswith(("v_readlane", "v_readfirstlane", "v_writelane")):
                n = max(n, 4)
    if p.is_salu and ("m0", 0) in p.defs and c.is_lds_dma:
        n = max(n, 1)
    if p.is_salu and ("exec", 0) in p.defs and (c.is_dpp or c.is_perm):
        n = max(n, 1)
    if p.store_data and (p.store_data & c.defs):
        n = max(n, 2)
    if p.is_mfma:
        D = p.defs
        big = 12 if p.passes == 8 else 8
        if c.is_mfma:
            if D & (c.srcA | c.srcB):
                n = max(n, big)
            if D & c.srcC:
                if not (D == c.srcC and c.passes == p.passes):
                    n = max(n, big - 2)
            elif D & c.defs:
                n = max(n, big)
        elif (c.is_valu or c.is_vmem or c.is_ds) and D & (c.uses | c.defs):
            n = max(n, big)
        if (c.is_valu or c.is_ds or c.is_vmem) and p.srcC & c.defs:
            n = max(n, 7 if p.passes == 8 else 3)
    return n


class Wait(Ins):
    def __init__(self, vm, ds, gap=0):
        super().__init__("s_waitcnt 0")
        self.vm, self.dsw, self.gap = vm, ds, gap


class Mark(Ins):
    def __init__(self, kind, name):
        super().__init__("")
        self.kind, self.name = kind, name


def _targets(x):
    if x is None or x == "all":
        return x
    if isinstance(x, (list, tuple, set)):
        x = [t for t in x if t is not None]
        return x or None
    return [x]


COST = dict(vmem=2, dsw128=5, dsw=2, slow=2)


def cost_of(i):
    if i.is_label or i.is_dir or isinstance(i, Mark) or not i.op:
        return 0
    if i.is_mfma:
        return -2
    if i.is_vmem:
        return COST["vmem"]
    if i.is_ds and "write" in i.op:
        return COST["dsw128"] if "b128" in i.op else COST["dsw"]
    if i.is_trans or i.is_perm:
        return COST["slow"]
    return 1


def lds_of(i):
    if i.is_ds and "read" in i.op:
        return 2 if "b128" in i.op else 1
    return 0


class _Capture:
    def __init__(self, asm):
        self.asm = asm

    def __enter__(self):
        self.saved = self.asm.ins
        self.asm.ins = []
        return self.asm.ins

    def __exit__(self, *a):
        self.asm.ins = self.saved


class _Atomic:
    def __init__(self, asm):
        self.asm = asm

    def __enter__(self):
        self.start = len(self.asm.ins)

    def __exit__(self, *a):
        self.asm.uid += 1
        for i in self.asm.ins[self.start:]:
            i.group = self.asm.uid


def units(lst):
    out = []
    for i in lst:
        g = getattr(i, "group", None)
        if g is not None and out and getattr(out[-1][-1], "group", None) == g:
            out[-1].append(i)
        else:
            out.append([i])
    return out


class Asm:
    def __init__(self):
        self.ins = []
        self.uid = 0
        self.before = []

    def e(self, text):
        for line in text.split("\n"):
            line = line.strip()
            if line:
                self.ins.append(Ins(line))
        return self.ins[-1]

    def label(self, base):
        self.uid += 1
        return f"L_{base}_{self.uid}"

    def capture(self):
        return _Capture(self)

    def atomic(self):
        return _Atomic(self)

    def cap(self, f, *a, **k):
        with self.capture() as lst:
            f(*a, **k)
        return lst

    def emit(self, lst):
        self.ins.extend(lst)

    def vm(self, text):
        i = self.e(text)
        i.counted = True
        return i

    ds = vm

    def wait(self, vm=None, ds=None, gap=0):
        vm, ds = _targets(vm), _targets(ds)
        if vm or ds:
            self.ins.append(Wait(vm, ds, gap))

    def mark(self, kind, name):
        self.ins.append(Mark(kind, name))

    def resolve(self):
        st = dict(vm=[0, 0], ds=[0, 0])
        saved = {}
        out = []
        for i in self.ins:
            if isinstance(i, Mark):
                if i.kind == "save":
                    saved[i.name] = {k: list(v) for k, v in st.items()}
                elif i.kind == "restore":
                    st = {k: list(v) for k, v in saved[i.name].items()}
                elif i.kind == "dsdrained":
                    st["ds"][1] = st["ds"][0]
                continue
            if isinstance(i, Wait):
                parts = []
                for key, tg, name, cap in (("vm", i.vm, "vmcnt", 63), ("ds", i.dsw, "lgkmcnt", 15)):
                    if tg is None:
                        continue
                    n, done = st[key]
                    if tg == "all":
                        idx = n - 1
                    else:
                        for t in tg:
                            assert hasattr(t, "seq"), "wait before its target: " + t.text
                        idx = max(t.seq for t in tg)
                    if idx >= done or tg == "all":
                        c = min(cap, n - idx - 1)
                        parts.append(f"{name}({c})")
                        st[key][1] = max(done, n - c)
                if parts:
                    out.append(Ins("s_waitcnt " + " ".join(parts)))
                continue
            if getattr(i, "counted", False):
                key = "vm" if i.is_vmem else "ds"
                i.seq = st[key][0]
                st[key][0] += 1
            out.append(i)
        return out

    def finish(self):
        out = []
        nops = 0
        pos = {id(i): k for k, i in enumerate(self.ins)}
        for a, b in self.before:
            assert pos[id(a)] < pos[id(b)], ("order", a.text, b.text)
        for c in self.resolve():
            if c.op and not c.is_label and not c.is_dir:
                dist = 0
                worst = 0
                for p in reversed(out):
                    if dist >= 20:
                        break
                    if p.op and not p.is_label and not p.is_dir:
                        k = need(p, c) - dist
                        if k > worst:
                            worst = k
                        dist += p.states()
                if worst > 0:
                    out.append(Ins(f"s_nop {worst - 1}"))
                    nops += 1
            out.append(c)
        self.nops = nops
        self.final = out
        return "\n".join(("" if (i.is_label or i.is_dir) else "    ") + i.text for i in out) + "\n"


def pack(asm, slots, streams, budget, report=None, ldsmax=3, relax=4):
    qs = []
    for extras in streams:
        q = []
        for n0, lst in sorted(extras, key=lambda x: x[0]):
            for u in units(lst):
                q.append((n0, u))
        qs.append(q)
    where = {id(i): None for q in qs for _, u in q for i in u}

    def blocked(u, n):
        for i in u:
            if isinstance(i, Wait):
                for tg in (i.vm, i.dsw):
                    if tg and tg != "all":
                        for t in tg:
                            if id(t) in where and t not in u and (where[id(t)] is None or n < where[id(t)] + i.gap):
                                return True
        return False
    reads, left = [], 0
    late = [0] * len(qs)
    over = 0
    for n, s in enumerate(slots):
        asm.emit(s.get("pre", []))
        asm.emit([s["mfma"]])
        bud = budget + (1 if any(q and n - q[0][0] >= relax for q in qs) else 0)
        b = bud - sum(cost_of(i) for i in s.get("post", []))
        if n + 1 < len(slots):
            b -= sum(cost_of(i) for i in slots[n + 1].get("pre", []))
        asm.emit(s.get("post", []))
        if "reads" in s:
            assert not reads
            reads, left = list(s["reads"]), s["due"]
        rmin = max(0, len(reads) - ldsmax * (left - 1)) if left else 0
        rwant = -(-len(reads) // left) if left else 0
        lds = ldsmax
        first = True
        nvm = 0
        for k, q in enumerate(qs):
            while q and q[0][0] <= n:
                c = sum(cost_of(i) for i in q[0][1])
                l = sum(lds_of(i) for i in q[0][1])
                v = sum(1 for i in q[0][1] if i.is_vmem)
                fits = c <= b - rwant and l <= lds - rwant
                squeeze = c <= b - rmin and l <= lds - rmin and (c > 1 or n - q[0][0] >= 2)
                force = first and n - q[0][0] >= 1 and c > budget - 3 and l <= max(lds - rmin, 0) + 1
                if (fits or squeeze or force) and not (v and nvm) and not blocked(q[0][1], n):
                    late[k] = max(late[k], n - q[0][0])
                    for i in q[0][1]:
                        where[id(i)] = n
                    asm.emit(q.pop(0)[1])
                    b -= c
                    lds -= l
                    nvm += v
                    first = False
                else:
                    break
        k = 0
        while reads and (k < rmin or (b >= 1 and lds >= 1)):
            asm.emit([reads.pop(0)])
            b -= 1
            lds -= 1
            k += 1
        if "tail" in s:
            asm.emit(s["tail"])
            if len(reads) > 0:
                asm.emit([reads.pop(0)])
        over += max(0, bud - budget - b) if b < bud - budget else 0
        if left:
            left -= 1
    if report is not None:
        report.append((late, [len(q) for q in qs], over))
    return [[u for _, u in q] for q in qs]
```

```python
import struct
import sys
from asmlib2 import Asm, pack

NAME = "sequential_preLN__sliding_local_dilated__glu_gated_bilinear__prompt"


def f2u(x):
    return struct.unpack("<I", struct.pack("<f", x))[0]


WS_O = 0
WS_H = 2 << 20
WS_HH = 4 << 20
WS_ST = 11 << 20
WS_CS = WS_ST + (256 << 10)
WS_FL = WS_ST + (384 << 10)
WS_STAMP = WS_ST + (512 << 10)
WS_SIZE = 12 << 20
F1, F2, F3, F0, F0B, F4 = 0, 256, 512, 768, 896, 1024

L_NM = 0
L_RS = 320
L_CRED = 0
L_R2 = 0
L_CS = 1024
L_FLEX = 2048
L_WR = 2048
L_XT = L_WR + 6 * 12288
XSTR = 1056
L_RING = 32768
L_RED = 2048
LDS_BYTES = 163840
SLOT0 = 6

sX, sWQ, sWO, sW3, sWD, sOUT, sWS, sWSF, sWSS, sDBG, sCSM = [f"s[{i}:{i+3}]" for i in range(24, 68, 4)]
sW, sG, sM, sT, sC, sXCC = "s68", "s69", "s70", "s71", "s72", "s73"
sFL = "s74"
sRG = "s75"
sA, sB, sCc, sD, sE = "s76", "s77", "s78", "s79", "s80"
sM0, sSO, sSO2, sSPIN, sM0b, sHB, sKI = "s81", "s82", "s83", "s84", "s85", "s86", "s87"
sMASK = "s[88:89]"
sSAVE = "s[90:91]"
sTS = "s[92:93]"
sROT = "s94"
sLC, sKQ = "s95", "s96"
sROTQ = "s19"
sQ = "s3"
sWDB = "s101"
sRUN, sRUNH = "s0", "s1"
sW3R, sW3E, sOB, sHHB, sHST, sTOK = "s4", "s5", "s6", "s7", "s8", "s9"
sH1, sH0, sTB = "s10", "s11", "s12"
sLEAD = "s[14:15]"
sW3B, sWDE = "s20", "s21"

NEG_BIG = f2u(-1e30)
ONES = 0x3F803F80
SPIN_MAX = 60000


class Gen(Asm):
    def __init__(self, opt):
        super().__init__()
        self.opt = opt
        self.tail = []
        self.nstamp = 0
        self.rep = []

    def stamp(self, name):
        if not self.opt.get("stamps") or (self.opt["stamps"] == 2 and name not in ("kernarg", "end")):
            return
        i = self.nstamp
        self.nstamp += 1
        self.opt.setdefault("stamp_names", []).append(name)
        with self.atomic():
            self.e(f"{'s_memrealtime' if self.opt['stamps'] == 3 else 's_memtime'} {sTS}")
            self.e("s_waitcnt lgkmcnt(0)")
            self.e(f"v_writelane_b32 v15, s92, {i}")

    def stamp_flush(self):
        if not self.opt.get("stamps"):
            return
        self.e("s_waitcnt vmcnt(0)")
        self.e(f"s_memrealtime {sTS}")
        self.e("s_waitcnt lgkmcnt(0)")
        self.e("v_writelane_b32 v15, s92, 63")
        self.e(f"s_lshl_b32 {sA}, s2, 2")
        self.e(f"s_add_u32 {sA}, {sA}, {sW}")
        self.e(f"s_lshl_b32 {sA}, {sA}, 8")
        self.e(f"s_add_u32 {sA}, {sA}, {WS_STAMP}")
        self.e("v_lshlrev_b32 v14, 2, v0")
        self.vm(f"buffer_store_dword v15, v14, {sWS}, {sA} offen")

    def hstore(self, op, data, voff, soff, extra="", wt=False):
        if wt:
            return self.vm(f"{op} {data}, {voff}, {sWS}, {soff} offen {extra} sc1")
        if self.opt.get("fast"):
            self.vm(f"{op} {data}, {voff}, {sWSF}, {soff} offen {extra}")
        return self.vm(f"{op} {data}, {voff}, {sWSS}, {soff} offen {extra} sc1")

    def flag_set(self, off, val):
        with self.atomic():
            self.e(f"v_mov_b32 v12, {val}")
            self.e("s_mov_b64 exec, 1")
            t = self.hstore("buffer_store_dword", "v12", "v11", sFL, f"offset:{off}")
            self.e("s_mov_b64 exec, -1")
        return t

    def spin_check(self, tok, reload, cond, tag, gap=0):
        spin, back = self.label("spin" + tag), self.label("back" + tag)
        self.wait(vm=tok, gap=gap)
        with self.atomic():
            cond()
            self.e("s_nop 0")
            self.e(f"s_cbranch_vccnz {spin}")
            self.e(f"{back}:")

        def tail():
            loop = self.label("loop")
            self.e(f"{spin}:")
            self.e(f"s_mov_b32 {sSPIN}, 0")
            self.e(f"{loop}:")
            reload(self.e)
            self.e(f"s_add_u32 {sSPIN}, {sSPIN}, 1")
            self.e(f"s_cmp_ge_u32 {sSPIN}, {SPIN_MAX}")
            self.e(f"s_cbranch_scc1 {back}")
            self.e("s_waitcnt vmcnt(0)")
            cond()
            self.e("s_nop 0")
            self.e(f"s_cbranch_vccnz {loop}")
            self.e(f"s_branch {back}")
        self.tail.append(tail)

    def poll_issue(self, vaddr, off):
        return self.vm(f"buffer_load_dword v12, v{vaddr}, {sWS}, {sFL} offen offset:{off} sc1")

    def poll_check(self, tok, vaddr, off, val, tag):
        self.spin_check(tok, lambda em: em(f"buffer_load_dword v12, v{vaddr}, {sWS}, {sFL} offen offset:{off} sc1"),
                        lambda: self.e(f"v_cmp_gt_u32 vcc, {val}, v12"), tag)

    def entry(self):
        e = self.e
        fast = self.opt.get("fast")
        e("s_cmp_ge_u32 s2, 256")
        e("s_cbranch_scc1 L_exit")
        if self.opt.get("dbgdur"):
            e("s_memrealtime s[92:93]")
            e("s_memtime s[90:91]")
            e("s_waitcnt lgkmcnt(0)")
            e("v_mov_b32 v15, s92")
            e("v_writelane_b32 v15, s90, 1")
        for base, off in ((24, 0), (28, 8), (48, 72), (32, 16), (60, 64), (52, 72), (56, 72), (40, 48), (44, 56)):
            e(f"s_load_dwordx2 s[{base}:{base+1}], s[0:1], {off}")
        e("v_lshrrev_b32 v1, 6, v0")
        e("v_and_b32 v0, 63, v0")
        e(f"v_readfirstlane_b32 {sW}, v1")
        e("v_lshlrev_b32 v1, 4, v0")
        if self.opt["codepf"]:
            e("s_getpc_b64 s[16:17]")
            e("s_lshr_b32 s18, s2, 3")
            e("s_lshl_b32 s18, s18, 2")
            e(f"s_add_u32 s18, s18, {sW}")
            e("s_mul_i32 s18, s18, 384")
            e("v_lshl_add_u32 v10, v0, 7, s18")
            e("v_min_u32 v10, L_code_end - L_code_pf, v10")
            e("s_mov_b64 exec, 7")
            e("L_code_pf:")
            self.vm("global_load_dword v231, v10, s[16:17]")
            e("s_mov_b64 exec, -1")
        e(f"s_cmp_ge_u32 {sW}, 2")
        e(f"s_cselect_b32 {sB}, 40, 32")
        e(f"s_load_dwordx2 s[36:37], s[0:1], {sB}")
        if self.opt.get("stamps"):
            e("v_mov_b32 v15, 0")
            e("s_memrealtime s[98:99]")
        for base, size in ((24, 2048*512*2), (28, 512*1536*2), (32, 512*512*2), (36, 512*1792*2), (40, 1792*512*2),
                           (44, 2048*512*2), (48, WS_SIZE), (52, WS_SIZE if fast else 0), (56, 0 if fast else WS_SIZE),
                           (60, 256)):
            e(f"s_mov_b32 s{base+2}, {size}")
            e(f"s_mov_b32 s{base+3}, 0x20000")
        e(f"s_getreg_b32 {sXCC}, hwreg(HW_REG_XCC_ID)")
        e(f"s_and_b32 {sXCC}, {sXCC}, 7")
        if self.opt["map"] == "xcd":
            e(f"s_and_b32 {sA}, s2, 7")
            e(f"s_lshr_b32 {sB}, s2, 3")
            e(f"s_lshr_b32 {sG}, {sB}, 4")
            e(f"s_lshl_b32 {sA}, {sA}, 1")
            e(f"s_add_u32 {sG}, {sG}, {sA}")
            e(f"s_and_b32 {sM}, {sB}, 15")
        else:
            e(f"s_lshr_b32 {sG}, s2, 4")
            e(f"s_and_b32 {sM}, s2, 15")
        e(f"s_lshr_b32 {sA}, {sM}, 3")
        e(f"s_lshl_b32 {sT}, {sG}, 1")
        e(f"s_add_u32 {sT}, {sT}, {sA}")
        e(f"s_and_b32 {sC}, {sM}, 7")
        self.p1_addr()
        if self.opt["addr2_early"]:
            self.p1_addr2()
        e("s_waitcnt lgkmcnt(0)")
        if self.opt.get("stamps"):
            e("v_writelane_b32 v15, s98, 62")

    def entry2(self):
        e = self.e
        e(f"s_lshl_b32 {sFL}, {sG}, 12")
        e(f"s_add_u32 {sFL}, {sFL}, {WS_FL}")
        e(f"s_lshl_b32 {sA}, {sM}, 2")
        e(f"s_add_u32 {sA}, {sA}, {sW}")
        e(f"s_cmp_eq_u32 {sA}, 0")
        e(f"s_cselect_b64 {sLEAD}, -1, 0")
        e(f"s_lshl_b32 {sA}, {sA}, 2")
        e(f"v_mov_b32 v11, {sA}")
        e(f"s_or_b32 {sTOK}, {sXCC}, 0x80")
        for r in range(4):
            e(f"v_mov_b32 v{96+r}, 0")
        e(f"s_mov_b64 exec, {sLEAD}")
        self.zero_tok = self.vm(f"buffer_store_dwordx4 v[96:99], v1, {sWS}, {sFL} offen sc1")
        e("s_mov_b64 exec, -1")

    accQ, accK, accV = 16, 36, 56
    vXo = 76
    vXw = 81
    vXr0, vXr1 = 82, 83
    vWt0, vWt1 = 84, 85
    vWq = 86
    vSt, vSr, vSv = 87, 88, 89
    vXres = 90
    vHa, vHel = 91, 92
    vZ = 94
    XL, XF, WF = 96, 0, 40
    B0, B1, BF, MA, MB = 240, 244, 248, 252, 254

    def p1_addr(self):
        e = self.e
        e("v_and_b32 v12, 15, v0")
        e("v_lshrrev_b32 v13, 4, v0")
        e(f"s_mov_b32 {sROT}, {sXCC if self.opt['rot'] else 0}")
        e(f"s_mov_b32 {sROTQ}, {sROT}")
        if self.opt["rotq"]:
            e(f"s_and_b32 {sA}, {sT}, 3")
            e(f"s_lshl_b32 {sA}, {sA}, 1")
            e(f"s_add_u32 {sROTQ}, {sROTQ}, {sA}")
            e(f"s_and_b32 {sROTQ}, {sROTQ}, 7")
        e(f"s_lshl_b32 {sA}, {sROTQ}, 7")
        e(f"v_add_u32 v{self.vXo}, {sA}, v1")
        e(f"v_and_b32 v{self.vXo}, 1023, v{self.vXo}")
        if self.opt["rotx"]:
            e(f"s_mul_i32 {sD}, {sC}, 5")
            e(f"s_lshr_b32 {sD}, {sD}, 3")
        else:
            e(f"s_mov_b32 {sD}, 0")
        e(f"s_lshl_b32 {sRG}, {sD}, 2")
        e(f"s_mul_i32 {sA}, {sW}, 20")
        e(f"s_lshl_b32 s97, {sT}, 6")
        e(f"s_add_u32 s97, s97, {sA}")
        e("s_sub_u32 s97, s97, 16")
        e(f"s_mul_i32 {sM0b}, {sW}, {20*XSTR}")
        e(f"s_add_u32 {sM0b}, {sM0b}, {L_XT}")
        e("v_lshrrev_b32 v10, 3, v0")
        e(f"v_mul_u32_u24 v{self.vWq}, 3072, v10")
        e("v_and_b32 v10, 1, v13")
        e(f"s_and_b32 {sA}, {sW}, 1")
        e(f"s_lshl_b32 {sA}, {sA}, 1")
        e(f"v_or_b32 v10, {sA}, v10")
        e("v_bfe_u32 v14, v0, 1, 2")
        e("v_xor_b32 v10, v10, v14")
        e(f"v_lshl_add_u32 v{self.vWq}, v10, 5, v{self.vWq}")
        e("v_and_b32 v10, 1, v0")
        e(f"v_lshl_add_u32 v{self.vWq}, v10, 4, v{self.vWq}")
        e(f"s_mul_i32 {sM0}, {sW}, 3072")
        e(f"s_add_u32 {sM0}, {sM0}, {L_WR}")
        e(f"s_mul_i32 {sHB}, {sW}, {8*3072}")
        e(f"s_lshl_b32 {sA}, {sC}, 7")
        e(f"s_add_u32 {sHB}, {sHB}, {sA}")
        e(f"s_mul_i32 {sKI}, {sROTQ}, {64*3072}")
        e(f"s_add_u32 {sSO}, {sKI}, {sHB}")
        e(f"s_add_u32 {sHB}, {sHB}, {512*3072}")

    def x_dma(self, i):
        e = self.e
        sb = f"s{98 + i % 3}"
        if i:
            e(f"s_add_u32 {sRG}, {sRG}, 4")
            e(f"s_cmp_ge_u32 {sRG}, 20")
            e(f"s_cselect_b32 {sRG}, 0, {sRG}")
        e(f"s_mul_i32 {sb}, {sRG}, {XSTR}")
        e(f"s_add_u32 {sb}, {sb}, {sM0b}")
        e(f"s_add_u32 {sA}, {sRG}, s97")
        e(f"s_max_i32 {sA}, {sA}, 0")
        e(f"s_mov_b32 m0, {sb}")
        e(f"s_lshl_b32 {sA}, {sA}, 10")
        for r in range(4):
            if r:
                e(f"s_add_u32 m0, {sb}, {r*(XSTR-1024)}")
            t = self.vm(f"buffer_load_dwordx4 v{self.vXo}, {sX}, {sA} offen offset:{r*1024} lds")
        return t

    def x_stats(self, i, tok, between=None):
        e = self.e
        XL, sreg = self.XL + 16 * (i % 2), 176
        e(f"v_add_u32 v{self.vXo+1}, s{98 + i % 3}, v{self.vXw}")
        e(f"v_add_u32 v{self.vXo+2}, s{98 + i % 3}, v{self.vXw+14}")
        self.wait(vm=tok)
        rt = []
        for q in range(4):
            a = self.vXo + (2 if q == 0 else 1)
            rt.append(self.ds(f"ds_read_b128 v[{XL+4*q}:{XL+4*q+3}], v{a} offset:{256*q}"))
        r = between() if between else None
        for d in range(16):
            if d % 8 == 0:
                self.wait(ds=rt[d // 4 + 1])
            c0 = "0" if d == 0 else f"v{sreg+2*i}"
            c1 = "0" if d == 0 else f"v{sreg+2*i+1}"
            e(f"v_dot2_f32_bf16 v{sreg+2*i}, v{XL+d}, {sE}, {c0}")
            e(f"v_dot2_f32_bf16 v{sreg+2*i+1}, v{XL+d}, v{XL+d}, {c1}")
        return r

    def p1_addr2(self):
        e = self.e
        e(f"v_lshlrev_b32 v{self.vXw}, 10, v13")
        e(f"v_lshl_add_u32 v{self.vXw}, v12, 4, v{self.vXw}")
        e("v_lshlrev_b32 v10, 1, v13")
        e("v_cmp_lt_u32 vcc, v12, v10")
        e(f"v_add_u32 v14, 1024, v{self.vXw}")
        e(f"v_add_u32 v{self.vXo+3}, {L_XT}, v1")
        e(f"v_cndmask_b32 v{self.vXw+14}, v{self.vXw}, v14, vcc")
        e(f"v_mul_u32_u24 v10, {XSTR}, v12")
        e("v_lshl_add_u32 v10, v13, 4, v10")
        e(f"v_add_u32 v{self.vXr0}, {L_XT}, v10")
        e(f"v_add_u32 v{self.vXr1}, {L_XT + 3*16*XSTR}, v10")
        e("v_lshrrev_b32 v10, 2, v12")
        e("v_mad_u32_u24 v10, v13, 24, v10")
        e(f"v_lshlrev_b32 v{self.vWt0}, 7, v10")
        e("v_lshrrev_b32 v10, 3, v12")
        e("v_and_b32 v14, 1, v13")
        e("v_lshl_or_b32 v10, v14, 1, v10")
        e(f"v_xor_b32 v10, {sW}, v10")
        e(f"v_lshl_add_u32 v{self.vWt0}, v10, 5, v{self.vWt0}")
        e("v_and_b32 v10, 3, v12")
        e(f"v_lshl_add_u32 v{self.vWt0}, v10, 3, v{self.vWt0}")
        e(f"v_add_u32 v{self.vWt0}, {L_WR}, v{self.vWt0}")
        e(f"v_add_u32 v{self.vWt1}, {3*12288}, v{self.vWt0}")
        e(f"s_mul_i32 {sA}, {sW}, 80")
        e(f"v_lshl_add_u32 v{self.vSt}, v13, 2, {sA}")
        e("v_lshrrev_b32 v10, 3, v12")
        e("v_bfe_u32 v14, v12, 2, 1")
        e("v_lshl_add_u32 v10, v14, 1, v10")
        e("v_and_b32 v14, 1, v12")
        e("v_lshl_add_u32 v10, v14, 2, v10")
        e(f"v_add_u32 v10, {sD}, v10")
        e("v_subrev_u32 v14, 5, v10")
        e("v_min_u32 v10, v10, v14")
        e(f"v_lshl_add_u32 v{self.vSt}, v10, 4, v{self.vSt}")
        e(f"v_lshlrev_b32 v{self.vSr}, 2, v12")
        e(f"v_lshlrev_b32 v{self.vSv}, 4, v13")
        e(f"s_lshl_b32 {sA}, {sG}, 2")
        if self.opt.get("dbgdur"):
            e(f"s_add_u32 {sA}, {sA}, 64")
        e(f"v_mov_b32 v{self.vHa}, {sA}")

    def p1_masks(self):
        e = self.e

        def lanes(f):
            m = sum(1 << l for l in range(64) if f(l & 15, l >> 4))
            e(f"s_mov_b32 vcc_lo, {m & 0xffffffff}")
            e(f"s_mov_b32 vcc_hi, {m >> 32}")
        e(f"v_mov_b32 v{self.vZ}, {NEG_BIG}")
        e("v_mov_b32 v10, 0")
        e(f"s_cmp_eq_u32 {sT}, 0")
        e(f"s_cselect_b64 {sMASK}, -1, 0")
        for r in range(4):
            lanes(lambda n, g: (n - r) % 2 == 0 and 4 * g + r <= n)
            e(f"v_cndmask_b32 v{self.B1+r}, v{self.vZ}, v10, vcc")
            lanes(lambda n, g: (n - r) % 2 == 0 and 4 * g + r > n)
            e(f"v_cndmask_b32 v{self.B0+r}, v{self.vZ}, v10, vcc")
            e(f"v_cndmask_b32 v{self.BF+r}, v{self.B0+r}, v{self.vZ}, {sMASK}")
        e("v_and_b32 v14, 1, v12")
        e("v_lshlrev_b32 v14, 4, v14")
        e(f"s_mov_b32 {sA}, 0xffff")
        e(f"v_lshlrev_b32 v{self.vZ}, v14, {sA}")
        for rp in range(2):
            lanes(lambda n, g: 4 * g + 2 * rp + (n & 1) <= n)
            e(f"v_cndmask_b32 v{self.MA+rp}, v10, v{self.vZ}, vcc")
            e(f"v_cndmask_b32 v{self.MB+rp}, v{self.vZ}, v10, vcc")
        for r in range(4):
            e(f"v_mov_b32 v{232+r}, {sE}")

    def p1_wdma_parts(self, s, wd):
        e = self.e

        def adv1():
            e(f"s_cmp_ge_u32 {sSO}, {sHB}")
            e(f"s_cselect_b32 {sKI}, {512*3072}, 0")

        def part(p):
            wd[s] = self.vm(f"buffer_load_dwordx4 v{self.vWq}, {sWQ}, {sSO} offen offset:{p*1024} lds")
        adv = [lambda: e(f"s_add_u32 {sSO}, {sSO}, {32*3072}"), adv1, lambda: e(f"s_sub_u32 {sSO}, {sSO}, {sKI}")] if s else []
        adv.append(lambda: e(f"s_add_u32 m0, {sM0}, {(s % 6) * 12288}"))
        return adv, [lambda p=p: part(p) for p in range(3)]

    def p1_wdma(self, s):
        wd = {}
        adv, parts = self.p1_wdma_parts(s, wd)
        for f in adv + parts:
            f()
        return wd[s]

    def p1_reads(self, s):
        buf, slot = s % 2, s % 6
        wt = self.vWt0 if slot < 3 else self.vWt1
        tok = {}
        self.fr[s] = tok

        def rw(p, rd):
            r = self.WF + buf * 12 + p * 4 + rd * 2
            tok[("w", p)] = self.ds(f"ds_read_b64_tr_b16 a[{r}:{r+1}], v{wt} offset:{(slot % 3)*12288 + p*1024 + rd*512}")

        def rx(b):
            r = self.XF + buf * 20 + b * 4
            base, bb = (self.vXr0, b) if b < 3 else (self.vXr1, b - 3)
            tok[("x", b)] = self.ds(f"ds_read_b128 a[{r}:{r+3}], v{base} offset:{bb*16*XSTR + 64*s}")
        seq = [(rw, 0, 0), (rw, 0, 1), (rx, 0), (rw, 1, 0), (rw, 1, 1), (rw, 2, 0), (rw, 2, 1), (rx, 1), (rx, 2), (rx, 3), (rx, 4)]
        return [lambda x=x: x[0](*x[1:]) for x in seq]

    def p1(self):
        e = self.e
        o = self.opt
        XL = self.XL
        xt, wd = {}, {}
        wpos = o["wpos"]

        def wstage(st):
            for k in range(5):
                if wpos[k] == st:
                    wd[k] = self.p1_wdma(k)
            if o["t3q"] == st:
                self.touch3(sWQ, 12)
        xt[0] = self.x_dma(0)
        xt[1] = self.x_dma(1)
        wstage(0)
        self.entry2()
        if not o["addr2_early"]:
            self.p1_addr2()
        e(f"s_mov_b32 {sE}, {ONES}")
        self.p1_masks()
        sreg = 176
        xt[2] = self.x_dma(2)
        self.stamp("issued")
        xt[3] = self.x_stats(0, xt[0], lambda: self.x_dma(3))
        self.stamp("x0")
        xt[4] = self.x_stats(1, xt[1], lambda: self.x_dma(4))
        wstage(1)
        self.late_addr0()

        def hello():
            e("v_mov_b32 v10, 1")
            e(f"s_and_b64 exec, {sLEAD}, 1")
            self.vm(f"buffer_store_dword v10, v{self.vHa}, {sDBG}, 0 offen sc1")
            e("s_mov_b64 exec, -1")
            wstage(2)
        self.x_stats(2, [xt[2], self.zero_tok], hello)
        self.late_addr1()
        self.x_stats(3, xt[3], lambda: wstage(3))
        self.late_addr2()
        self.x_stats(4, xt[4], lambda: wstage(4))
        e(f"s_cmp_eq_u32 {sW}, 0")
        e("s_cselect_b64 exec, -1, 0")
        self.ds(f"ds_write_b128 v{self.vXo+3}, v[232:235]")
        e("s_mov_b64 exec, -1")
        wstage(5)
        def dpp(d, src, ctl, bank):
            e(f"v_add_f32_dpp v{d}, v{src}, v{src} {ctl} row_mask:0xf bank_mask:{bank}")
        for k in range(2):
            dpp(sreg + k, sreg + k, "row_ror:8", "0xf")
            dpp(sreg + 4 + k, sreg + 4 + k, "row_ror:8", "0xf")
            dpp(sreg + 8 + k, sreg + 8 + k, "row_ror:8", "0xf")
        for k in range(2):
            dpp(sreg + k, sreg + 2 + k, "row_ror:8", "0xc")
            dpp(sreg + 4 + k, sreg + 6 + k, "row_ror:8", "0xc")
        for k in range(2):
            dpp(sreg + 8 + k, sreg + 8 + k, "row_half_mirror", "0xf")
        for k in range(2):
            dpp(sreg + k, sreg + k, "row_half_mirror", "0xf")
        for k in range(2):
            dpp(sreg + k, sreg + 4 + k, "row_half_mirror", "0xa")
        for ctl in ("quad_perm:[1,0,3,2]", "quad_perm:[2,3,0,1]"):
            for k in range(2):
                dpp(sreg + 8 + k, sreg + 8 + k, ctl, "0xf")
            for k in range(2):
                dpp(sreg + k, sreg + k, ctl, "0xf")
        e("s_mov_b32 vcc_lo, 0x00020002")
        e("s_mov_b32 vcc_hi, 0x00020002")
        e(f"v_cndmask_b32 v{sreg}, v{sreg}, v{sreg+8}, vcc")
        e(f"v_cndmask_b32 v{sreg+1}, v{sreg+1}, v{sreg+9}, vcc")
        e(f"s_sub_u32 {sW3B}, {sW3E}, {512*3584}")
        e(f"v_mul_f32 v{sreg}, {f2u(-1.0/512)}, v{sreg}")
        e(f"v_mul_f32 v{sreg+1}, {f2u(1.0/512)}, v{sreg+1}")
        e(f"v_fma_f32 v{sreg+1}, -v{sreg}, v{sreg}, v{sreg+1}")
        e(f"v_max_f32 v{sreg+1}, 0, v{sreg+1}")
        e(f"v_add_f32 v{sreg+1}, {f2u(1e-5)}, v{sreg+1}")
        e(f"v_rsq_f32 v{sreg+1}, v{sreg+1}")
        e("s_mov_b32 exec_lo, 0x11131113")
        e("s_mov_b32 exec_hi, 0x11131113")
        t = self.ds(f"ds_write2_b32 v{self.vSt}, v{sreg}, v{sreg+1} offset0:0 offset1:80")
        e("s_mov_b64 exec, -1")
        self.wait(vm=wd[0], ds=t)
        e("s_barrier")
        self.stamp("xdone")
        self.fr = {}
        for f in self.p1_reads(0):
            f()
        wstage(6)
        hl = {}

        def hel_load():
            hl[0] = self.vm(f"buffer_load_dword v{self.vHel}, v{self.vHa}, {sDBG}, 0 offen sc1")

        def hel_check():
            self.spin_check(hl[0], lambda em: em(f"buffer_load_dword v{self.vHel}, v{self.vHa}, {sDBG}, 0 offen sc1"),
                            lambda: e(f"v_cmp_ne_u32 vcc, 1, v{self.vHel}"), "hel")

        def tok_store():
            e(f"v_mov_b32 v{self.vHel}, {sTOK}")
            e(f"v_lshrrev_b32 v{self.vHa}, 2, v11")
            e(f"s_cmp_eq_u32 {sW}, 0")
            e("s_cselect_b64 exec, 1, 0")
            self.vm(f"buffer_store_dword v{self.vHel}, v{self.vHa}, {sWS}, {sFL} offen offset:{F0}")
            e("s_mov_b64 exec, -1")

        def tok_load():
            self.tok_tok = self.vm(f"buffer_load_dword v{self.vHel}, v{self.vSr}, {sWS}, {sFL} offen offset:{F0} sc1")
        for s in range(16):
            reads = self.p1_reads(s + 1) if s < 15 else self.p1_epi_reads()
            if s in (4, 8, 11):
                self.stamp(f"p1_{s}")
            gap = {k: [] for k in range(15)}
            dg = o["dgaps"]
            rg = [k for k in range(1, 15) if k not in dg] if s < 15 else list(range(1, 15))
            for k, f in enumerate(reads):
                gap[rg[k]].append(f)
            if s + 5 < 16:
                if s == 0:
                    adv, nxt = self.p1_wdma_parts(5, wd)
                    for f in adv:
                        f()
                for k, f in enumerate(nxt):
                    gap[dg[k]].append(f)
                if s + 6 < 16:
                    adv, nxt = self.p1_wdma_parts(s + 6, wd)
                    for k, f in enumerate(adv):
                        gap[min(14, dg[2] + 1 + k)].append(f)
            if s == 10:
                gap[dg[2] + 1].append(self.wo_setup)
                gap[14].append(lambda: self.wo_prep(0))
            if s >= 11:
                for k, u in enumerate(range(3 * (s - 11), 3 * (s - 10))):
                    gap[dg[k]].insert(0, lambda u=u: self.wo_dma(u))
                    gap[dg[k] + 1].append(lambda u=u: self.wo_prep(u + 1))
            if s == o["s_hel"]:
                gap[11].append(hel_load)
            if s == o["s_hel"] + 4:
                gap[0].append(hel_check)
                gap[11].append(tok_store)
            if s == 13:
                gap[13].append(tok_load)
            if s == o["s_touch"]:
                gap[12].append(self.touch_oh)
            if s == o["t3o"]:
                gap[13].append(lambda: self.touch3(sWO, 4))
            if s == o["s_two"]:
                gap[13].append(lambda: self.touch_w(sWO, 4))
            if s == o["s_twd"]:
                gap[13].append(lambda: self.touch_w(sWD, 14))
            tok = self.fr[s]
            buf = s % 2
            n = 0
            for b in range(5):
                for p in range(3):
                    if n == 0:
                        self.wait(ds=tok[("w", 2)])
                    if n == 3:
                        self.wait(ds=tok[("x", 2)])
                    if n == 9:
                        self.wait(ds=tok[("x", 4)])
                    xr = self.XF + buf * 20 + b * 4
                    wr = self.WF + buf * 12 + p * 4
                    acc = (self.accQ, self.accK, self.accV)[p] + 4 * b
                    c = "0" if s == 0 else f"v[{acc}:{acc+3}]"
                    if p < 2:
                        e(f"v_mfma_f32_16x16x32_bf16 v[{acc}:{acc+3}], a[{wr}:{wr+3}], a[{xr}:{xr+3}], {c}")
                    else:
                        e(f"v_mfma_f32_16x16x32_bf16 v[{acc}:{acc+3}], a[{xr}:{xr+3}], a[{wr}:{wr+3}], {c}")
                    if n == 0:
                        if s < 15:
                            self.wait(vm=wd[s + 1])
                        if not o.get("x_nobar"):
                            e("s_barrier")
                    for f in gap[n]:
                        f()
                    n += 1
        self.stamp("p1loop")

    def p1_epi_reads(self):
        NS, NV = 96, 108
        self.epi_t1, self.epi_t2 = {}, {}

        def xr(h):
            for q in (2 * h, 2 * h + 1):
                self.ds(f"ds_read_b64 v[{2+2*q}:{3+2*q}], v{self.vXres} offset:{16*q}")

        def r1(b):
            self.epi_t1[b] = self.ds(f"ds_read2_b32 v[{NS+2*b}:{NS+2*b+1}], v{self.vSr} offset0:{16*b} offset1:{16*b+80}")

        def r2(b):
            self.ds(f"ds_read_b128 v[{NV+8*b}:{NV+8*b+3}], v{self.vSv} offset:{L_NM + 64*b}")
            self.epi_t2[b] = self.ds(f"ds_read_b128 v[{NV+8*b+4}:{NV+8*b+7}], v{self.vSv} offset:{L_RS + 64*b}")
        return [lambda h=h: xr(h) for h in range(2)] + [lambda b=b: r1(b) for b in range(5)] + [lambda b=b: r2(b) for b in range(5)]

    def p1_epi(self, g1):
        e = self.e
        Q, K, V = self.accQ, self.accK, self.accV
        NS = 96
        NV = 108
        CQ, CK, CV = 148, 152, 156
        VP = 158
        CS4 = 168
        g1 = list(g1)

        def dma(k=1):
            for _ in range(k):
                if g1:
                    self.emit(g1.pop(0))
        dma(2)
        for r in range(4):
            e(f"v_mov_b32_dpp v{CQ+r}, v{Q+r} row_newbcast:0 row_mask:0xf bank_mask:0xf")
            e(f"v_mov_b32_dpp v{CK+r}, v{K+r} row_newbcast:0 row_mask:0xf bank_mask:0xf")
        e(f"v_mov_b32 v{CV}, v{V}")
        e(f"v_mov_b32 v{CV+1}, v{V}")
        e(f"s_mov_b32 {sE}, {f2u(0.25 * 1.4426950408889634)}")
        dma()
        e(f"v_permlane16_swap_b32 v{CV}, v{CV+1}")
        e(f"v_mov_b32 v{CV+1}, v{CV}")
        for b in range(5):
            nm = f"v[{NS+2*b}:{NS+2*b+1}]"
            for h in range(2):
                a = K + 4 * b + 2 * h
                e(f"v_pk_fma_f32 v[{a}:{a+1}], v[{CK+2*h}:{CK+2*h+1}], {nm}, v[{a}:{a+1}] op_sel_hi:[1,0,1]")
            if b > 0:
                for h in range(2):
                    a = Q + 4 * b + 2 * h
                    e(f"v_pk_fma_f32 v[{a}:{a+1}], v[{CQ+2*h}:{CQ+2*h+1}], {nm}, v[{a}:{a+1}] op_sel_hi:[1,0,1]")
            else:
                e(f"v_permlane32_swap_b32 v{CV}, v{CV+1}")
            for h in range(2):
                a = K + 4 * b + 2 * h
                e(f"v_pk_mul_f32 v[{a}:{a+1}], v[{a}:{a+1}], {nm} op_sel:[0,1] op_sel_hi:[1,1]")
            if b > 0:
                e(f"v_mul_f32 v{CS4+b-1}, {sE}, v{NS+2*b+1}")
                e(f"v_cvt_pk_bf16_f32 v{Q+4*b}, v{Q+4*b}, v{Q+4*b+1}")
                e(f"v_cvt_pk_bf16_f32 v{Q+4*b+1}, v{Q+4*b+2}, v{Q+4*b+3}")
            e(f"v_cvt_pk_bf16_f32 v{K+4*b}, v{K+4*b}, v{K+4*b+1}")
            e(f"v_cvt_pk_bf16_f32 v{K+4*b+1}, v{K+4*b+2}, v{K+4*b+3}")
            dma()
        S = 176
        for b in range(1, 5):
            s0 = S + 8 * (b - 1)
            bias0 = self.BF if b == 1 else self.B0
            e(f"v_mfma_f32_16x16x16_bf16 v[{s0}:{s0+3}], v[{K+4*(b-1)}:{K+4*(b-1)+1}], v[{Q+4*b}:{Q+4*b+1}], v[{bias0}:{bias0+3}]")
            e(f"v_mfma_f32_16x16x16_bf16 v[{s0+4}:{s0+7}], v[{K+4*b}:{K+4*b+1}], v[{Q+4*b}:{Q+4*b+1}], v[{self.B1}:{self.B1+3}]")
        dma(8)
        self.group_check()
        for b in range(5):
            for h in range(2):
                a = V + 4 * b + 2 * h
                e(f"v_pk_fma_f32 v[{a}:{a+1}], v[{NV+8*b+2*h}:{NV+8*b+2*h+1}], v[{CV}:{CV+1}], v[{a}:{a+1}] op_sel_hi:[1,0,1]")
            for h in range(2):
                a = V + 4 * b + 2 * h
                e(f"v_pk_mul_f32 v[{a}:{a+1}], v[{a}:{a+1}], v[{NV+8*b+4+2*h}:{NV+8*b+5+2*h}]")
            e(f"v_cvt_pk_bf16_f32 v{VP+2*b}, v{V+4*b}, v{V+4*b+1}")
            e(f"v_cvt_pk_bf16_f32 v{VP+2*b+1}, v{V+4*b+2}, v{V+4*b+3}")
        M, X = 108, 116
        for i in range(4):
            s0 = S + 8 * i
            for rp in range(2):
                e(f"v_max3_f32 v{M+2*i+rp}, v{s0+2*rp}, v{s0+2*rp+1}, v{s0+4+2*rp}")
        for i in range(4):
            s0 = S + 8 * i
            for rp in range(2):
                e(f"v_max_f32 v{M+2*i+rp}, v{M+2*i+rp}, v{s0+5+2*rp}")
        for i in range(4):
            e(f"v_max_f32 v{X+i}, v{M+2*i}, v{M+2*i+1}")
        e(f"v_permlane32_swap_b32 v{X}, v{X+2}")
        e(f"v_permlane32_swap_b32 v{X+1}, v{X+3}")
        e(f"v_max_f32 v{X}, v{X}, v{X+2}")
        e(f"v_max_f32 v{X+1}, v{X+1}, v{X+3}")
        e(f"v_permlane16_swap_b32 v{X}, v{X+1}")
        e(f"v_max_f32 v{X}, v{X}, v{X+1}")
        e(f"v_mov_b32 v{X+1}, v{X}")
        e(f"v_permlane16_swap_b32 v{X}, v{X+1}")
        e(f"v_mov_b32 v{X+2}, v{X}")
        e(f"v_mov_b32 v{X+3}, v{X+1}")
        e(f"v_permlane32_swap_b32 v{X}, v{X+2}")
        e(f"v_permlane32_swap_b32 v{X+1}, v{X+3}")
        for i in range(4):
            e(f"v_mul_f32 v{X+i}, v{X+i}, v{CS4+i}")
        for i in range(4):
            for rp in range(2):
                e(f"v_fma_f32 v{M+2*i+rp}, v{M+2*i+rp}, v{CS4+i}, -v{X+i}")
        for i in range(4):
            for rp in range(2):
                e(f"v_exp_f32 v{M+2*i+rp}, v{M+2*i+rp}")
        P, ON, O, D = 124, 232, 176, 192
        for i in range(4):
            for rp in range(2):
                e(f"v_cvt_pk_bf16_f32 v{M+2*i+rp}, v{M+2*i+rp}, v{M+2*i+rp}")
        for i in range(4):
            for rp in range(2):
                e(f"v_and_b32 v{P+4*i+rp}, v{M+2*i+rp}, v{self.MB+rp}")
                e(f"v_and_b32 v{P+4*i+2+rp}, v{M+2*i+rp}, v{self.MA+rp}")
            if i:
                e(f"v_mfma_f32_16x16x32_bf16 v[{D+4*i-4}:{D+4*i-1}], v[{ON}:{ON+3}], v[{P+4*i-4}:{P+4*i-1}], 0")
        e(f"v_mfma_f32_16x16x32_bf16 v[{O}:{O+3}], v[{VP}:{VP+3}], v[{P}:{P+3}], 0")
        e(f"v_mfma_f32_16x16x32_bf16 v[{D+12}:{D+15}], v[{ON}:{ON+3}], v[{P+12}:{P+15}], 0")
        for i in range(1, 4):
            e(f"v_mfma_f32_16x16x32_bf16 v[{O+4*i}:{O+4*i+3}], v[{VP+2*i}:{VP+2*i+3}], v[{P+4*i}:{P+4*i+3}], 0")
        e(f"s_add_u32 {sCc}, {sOB}, {32*1024}")
        for i in range(4):
            e(f"v_rcp_f32 v{D+4*i}, v{D+4*i}")
        OQ = 96
        for tb in range(2):
            for i in (2 * tb, 2 * tb + 1):
                for h in range(2):
                    a = O + 4 * i + 2 * h
                    e(f"v_pk_mul_f32 v[{a}:{a+1}], v[{a}:{a+1}], v[{D+4*i}:{D+4*i+1}] op_sel_hi:[1,0]")
            for i in (2 * tb, 2 * tb + 1):
                e(f"v_cvt_pk_bf16_f32 v{OQ+2*i}, v{O+4*i}, v{O+4*i+1}")
                e(f"v_cvt_pk_bf16_f32 v{OQ+2*i+1}, v{O+4*i+2}, v{O+4*i+3}")
            e(f"v_permlane16_swap_b32 v{OQ+4*tb}, v{OQ+4*tb+2}")
            e(f"v_permlane16_swap_b32 v{OQ+4*tb+1}, v{OQ+4*tb+3}")
            self.o_tok = self.hstore("buffer_store_dwordx4", f"v[{OQ+4*tb}:{OQ+4*tb+3}]", "v1", (sOB, sCc)[tb], wt=not self.opt["touch"] & 1)

    def group_check(self):
        e = self.e
        H = self.vHel
        spin, back = self.label("gspin"), self.label("gback")
        self.wait(vm=self.tok_tok)
        e(f"v_cmp_ne_u32 vcc, {sTOK}, v{H}")
        e("s_nop 0")
        e(f"s_cbranch_vccnz {spin}")
        e(f"{back}:")

        def tail():
            loop, done = self.label("loop"), self.label("gdone")
            e(f"{spin}:")
            e(f"s_mov_b32 {sSPIN}, 0")
            e(f"v_mov_b32 v10, {sTOK}")
            e("v_lshrrev_b32 v95, 4, v11")
            e("v_lshlrev_b32 v95, 2, v95")
            e("s_mov_b64 exec, 1")
            e(f"buffer_store_dword v10, v95, {sWS}, {sFL} offen offset:{F0B} sc1")
            e("s_mov_b64 exec, -1")
            e(f"{loop}:")
            e(f"buffer_load_dword v{H}, v{self.vSr}, {sWS}, {sFL} offen offset:{F0} sc1")
            e(f"buffer_load_dword v10, v{self.vSr}, {sWS}, {sFL} offen offset:{F0B} sc1")
            e(f"s_add_u32 {sSPIN}, {sSPIN}, 1")
            e(f"s_cmp_ge_u32 {sSPIN}, {SPIN_MAX}")
            e(f"s_cbranch_scc1 {done}")
            e("s_waitcnt vmcnt(0)")
            e(f"v_or_b32 v{H}, v{H}, v10")
            e(f"v_cmp_eq_u32 vcc, 0, v{H}")
            e("s_nop 0")
            e(f"s_cbranch_vccnz {loop}")
            e(f"{done}:")
            e("s_waitcnt vmcnt(0)")
            e(f"v_cmp_ne_u32 vcc, {sTOK}, v{H}")
            e("s_nop 0")
            e(f"s_cbranch_vccz {back}")
            e("s_mov_b32 s54, 0")
            e(f"s_mov_b32 s58, {WS_SIZE}")
            e(f"s_branch {back}")
        self.tail.append(tail)

    vKs, vP1, vT2 = 224, 225, 226
    vTch = 229
    vSel, vCa, vMB, vCsw, vCsx = 224, 228, 232, 238, 239
    vT4, vKs4, vW3, vT3 = 208, 210, 211, 212
    vCsr, vNm3, vP2, vP3 = 220, 221, 222, 223
    vR2 = 120
    SIG = [4, 5, 0, 1, 2, 3]

    def late_addr0(self):
        e = self.e
        e("v_lshrrev_b32 v10, 3, v0")
        e("v_and_b32 v14, 2, v10")
        e(f"v_bfe_u32 v{self.vKs}, v0, 1, 2")
        e(f"v_xor_b32 v14, v14, v{self.vKs}")
        e("v_lshlrev_b32 v14, 5, v14")
        e(f"v_and_b32 v{self.vKs}, 1, v0")
        e(f"v_lshl_add_u32 v14, v{self.vKs}, 4, v14")
        e(f"v_lshl_add_u32 v{self.vKs4}, v10, 10, v14")
        e(f"v_and_b32 v{self.vKs}, 4, v10")
        e(f"v_add_u32 v10, v10, v{self.vKs}")
        e(f"v_lshl_add_u32 v{self.vKs}, v10, 10, v14")
        e("v_lshrrev_b32 v10, 5, v0")
        e(f"v_lshlrev_b32 v{self.vCsr}, 4, v10")
        e("v_bfe_u32 v14, v0, 2, 2")
        e("v_lshl_add_u32 v10, v10, 2, v14")
        e(f"v_lshlrev_b32 v{self.vT4}, 7, v10")
        e("v_and_b32 v10, 3, v0")
        e(f"v_lshl_add_u32 v{self.vT4}, v10, 3, v{self.vT4}")
        e(f"v_mov_b32 v{self.vT3}, v{self.vT4}")
        e("v_and_b32 v10, 2, v14")
        e("v_bfe_u32 v14, v0, 4, 1")
        e("v_xor_b32 v10, v10, v14")
        e(f"s_and_b32 {sB}, {sW}, 1")
        e(f"s_lshl_b32 {sA}, {sB}, 1")
        e(f"v_xor_b32 v10, {sA}, v10")
        e(f"v_lshl_add_u32 v{self.vT4}, v10, 5, v{self.vT4}")
        e(f"v_add_u32 v{self.vT2}, {sM0}, v{self.vT4}")
        e(f"v_xor_b32 v{self.vT2+1}, 64, v{self.vT2}")
        e(f"s_lshl_b32 {sQ}, {sW}, 11")
        e(f"v_add_u32 v{self.vT4}, {sQ}, v{self.vT4}")
        e(f"v_xor_b32 v{self.vT4+1}, 64, v{self.vT4}")

    def late_addr1(self):
        e = self.e
        e("v_bfe_u32 v14, v0, 4, 1")
        e("v_lshrrev_b32 v10, 3, v0")
        e(f"v_mul_u32_u24 v{self.vW3}, 3584, v10")
        e("v_and_b32 v10, 7, v0")
        e(f"v_lshlrev_b32 v{self.vP1}, 2, v10")
        e(f"s_and_b32 {sA}, {sW}, 2")
        e(f"v_or_b32 v10, {sA}, v14")
        e("v_bfe_u32 v14, v0, 1, 2")
        e("v_xor_b32 v10, v10, v14")
        e(f"v_lshl_add_u32 v{self.vW3}, v10, 5, v{self.vW3}")
        e("v_and_b32 v10, 1, v0")
        e(f"v_lshl_add_u32 v{self.vW3}, v10, 4, v{self.vW3}")
        e(f"s_and_b32 {sB}, {sW}, 1")
        e(f"s_mul_i32 {sW3E}, {sB}, {16*3584}")
        e(f"s_min_u32 {sCc}, {sM}, 13")
        e(f"s_and_b32 {sA}, {sCc}, {self.opt.get('x_w3mask', 15)}")
        e(f"s_lshl_b32 {sA}, {sA}, 8")
        e(f"s_add_u32 {sW3E}, {sW3E}, {sA}")
        e(f"s_mul_i32 {sW3R}, {sROT}, {64*3584 if self.opt['rot3'] else 0}")
        e(f"s_add_u32 {sW3R}, {sW3R}, {sW3E}")
        e(f"s_add_u32 {sW3E}, {sW3E}, {512*3584}")
        e(f"s_lshl_b32 {sOB}, {sT}, 4")
        e(f"s_add_u32 {sOB}, {sOB}, {sC}")
        e(f"s_lshl_b32 {sOB}, {sOB}, 12")
        e(f"s_lshr_b32 {sTB}, {sW}, 1")
        e(f"s_lshl_b32 {sA}, {sTB}, 15")
        e(f"s_add_u32 {sHST}, {sOB}, {sA}")
        e(f"s_lshl_b32 {sA}, {sB}, 11")
        e(f"s_add_u32 {sHST}, {sHST}, {sA}")
        e(f"s_add_u32 {sHST}, {sHST}, {WS_H}")
        e(f"s_lshl_b32 {sA}, {sW}, 10")
        e(f"s_add_u32 {sOB}, {sOB}, {sA}")
        e("v_and_b32 v10, 31, v0")
        e(f"v_mul_u32_u24 v10, {XSTR}, v10")
        e(f"v_lshrrev_b32 v14, 1, v{self.vCsr}")
        e("v_add_u32 v10, v10, v14")
        e(f"s_lshl_b32 {sA}, {sC}, 1")
        e(f"s_add_u32 {sA}, {sA}, {sB}")
        e(f"s_lshl_b32 {sB}, {sROTQ}, 1")
        e(f"s_sub_u32 {sA}, {sA}, {sB}")
        e(f"s_and_b32 {sA}, {sA}, 15")
        e(f"s_lshl_b32 {sA}, {sA}, 6")
        e(f"s_mul_i32 {sB}, {sTB}, {32*XSTR}")
        e(f"s_add_u32 {sA}, {sA}, {sB}")
        e(f"s_add_u32 {sA}, {sA}, {L_XT + 16*XSTR}")
        e(f"v_add_u32 v{self.vXres}, {sA}, v10")

    def late_addr2(self):
        e = self.e
        e(f"s_and_b32 {sCc}, {sM}, 8")
        e(f"s_lshl_b32 {sB}, {sW}, 1")
        e(f"s_add_u32 {sA}, {sCc}, {sB}")
        e(f"s_lshl_b32 {sA}, {sA}, 4")
        e(f"v_add_u32 v{self.vP1}, {sA}, v{self.vP1}")
        e("v_and_b32 v10, 7, v0")
        e(f"v_lshlrev_b32 v{self.vTch}, 7, v10")
        e("v_bfe_u32 v10, v0, 3, 1")
        e(f"v_lshl_add_u32 v{self.vTch}, v10, 15, v{self.vTch}")
        e(f"v_add_u32 v14, {8*3584}, v{self.vW3}")
        e(f"v_add_u32 v238, 4096, v{self.vKs}")
        e("s_lshl_b32 s23, s2, 2")
        e(f"s_add_u32 s23, s23, {sW}")
        e("v_lshlrev_b32 v239, 7, v0")

    def late_wd(self):
        e = self.e
        e(f"s_lshl_b32 {sWDB}, {sW}, 14")
        e(f"s_and_b32 {sA}, {sC}, {self.opt.get('x_wdmask', 7)}")
        e(f"s_lshl_b32 {sA}, {sA}, 7")
        e(f"s_add_u32 {sWDB}, {sWDB}, {sA}")
        e(f"s_mul_i32 {sA}, {sROT}, {7 if self.opt['rot4'] else 0}")
        e(f"s_lshr_b32 {sA}, {sA}, 2")
        e(f"s_lshl_b32 {sRUN}, {sA}, 17")
        e(f"s_add_u32 {sRUN}, {sRUN}, {sWDB}")
        e(f"s_lshl_b32 {sRUNH}, {sA}, 12")
        e(f"s_add_u32 {sWDE}, {sWDB}, {14 << 17}")
        e(f"v_add_u32 v13, 8192, v{self.vKs4}")
        e(f"v_add_u32 v236, 131072, v{self.vT4}")
        e(f"v_add_u32 v237, 131072, v{self.vT4+1}")

    def late_p2(self):
        e = self.e
        e("v_bfe_u32 v10, v0, 1, 3")
        e("v_lshlrev_b32 v10, 4, v10")
        e("v_and_b32 v95, 1, v0")
        e("v_lshl_add_u32 v10, v95, 2, v10")
        e(f"s_lshl_b32 {sA}, {sTB}, 7")
        e(f"s_and_b32 {sB}, {sW}, 1")
        e(f"s_lshl_b32 {sB}, {sB}, 3")
        e(f"s_add_u32 {sA}, {sA}, {sB}")
        e(f"v_add_u32 v{self.vP2}, {sA}, v10")

    def late_b(self):
        e = self.e
        T = self.vT3
        e("v_bfe_u32 v95, v0, 4, 1")
        e(f"v_lshl_add_u32 v{T}, v95, 12, v{T}")
        e("v_bfe_u32 v10, v0, 3, 1")
        e("v_lshl_or_b32 v10, v95, 1, v10")
        e(f"v_lshl_add_u32 v{T}, v10, 5, v{T}")
        e(f"s_lshl_b32 {sA}, {sW}, 5")
        e(f"v_xor_b32 v{T}, {sA}, v{T}")
        e(f"v_add_u32 v{T}, {L_RING}, v{T}")
        for b in range(1, 4):
            e(f"v_xor_b32 v{T+b}, {32*b}, v{T}")
        for b in range(4):
            e(f"v_add_u32 v{T+4+b}, 65536, v{T+b}")
        e(f"s_lshl_b32 {sHHB}, {sG}, 2")
        e(f"s_add_u32 {sHHB}, {sHHB}, {sW}")
        e(f"s_mul_i32 {sHHB}, {sHHB}, 28")
        e(f"s_add_u32 {sHHB}, {sHHB}, {sM}")
        e(f"s_lshl_b32 {sHHB}, {sHHB}, 12")
        e(f"s_add_u32 {sHHB}, {sHHB}, {WS_HH}")
        m = sum(1 << l for l in range(64) if (l & 15) == ((l >> 4) & 1))
        e(f"s_mov_b32 vcc_lo, {m & 0xffffffff}")
        e(f"s_mov_b32 vcc_hi, {m >> 32}")
        e(f"v_mov_b32 v10, {ONES}")
        for r in range(4):
            e(f"v_cndmask_b32 v{self.vSel+r}, 0, v10, vcc")
        e("v_and_b32 v10, 1, v0")
        e("v_lshlrev_b32 v10, 8, v10")
        e("v_lshrrev_b32 v95, 4, v0")
        e("v_lshl_add_u32 v10, v95, 4, v10")
        e(f"s_lshl_b32 {sA}, {sW}, 6")
        e(f"v_add_u32 v{self.vCsw}, {sA}, v10")
        e("v_and_b32 v10, 15, v0")
        e("v_lshlrev_b32 v10, 2, v10")
        e("v_and_b32 v95, 1, v95")
        e("v_lshl_add_u32 v10, v95, 8, v10")
        e(f"v_add_u32 v{self.vCsx}, {sA}, v10")
        for r in (194, 195, 198, 199):
            e(f"v_mov_b32 v{r}, 0")

    def late_p3(self):
        e = self.e
        e("v_bfe_u32 v10, v0, 1, 4")
        e("v_min_u32 v10, 13, v10")
        e("v_lshlrev_b32 v10, 4, v10")
        e("v_and_b32 v95, 1, v0")
        e("v_lshl_add_u32 v10, v95, 2, v10")
        e(f"s_and_b32 {sA}, {sM}, 8")
        e(f"v_add_u32 v{self.vP3}, {sA}, v10")

    def touch3(self, srd, n, tmp="v10"):
        e = self.e
        e(f"s_lshr_b32 {sA}, s2, 3")
        e(f"s_lshl_b32 {sA}, {sA}, 2")
        e(f"s_add_u32 {sA}, {sA}, {sW}")
        e(f"s_mul_i32 {sA}, {sA}, {n*1024}")
        e(f"v_lshlrev_b32 {tmp}, 10, v0")
        with self.atomic():
            e(f"s_mov_b64 exec, {(1 << n) - 1}")
            self.vm(f"buffer_load_dword v231, {tmp}, {srd}, {sA} offen offset:384")
            e("s_mov_b64 exec, -1")

    def touch_w(self, srd, n):
        self.e(f"s_mul_i32 {sA}, s23, {n*128}")
        with self.atomic():
            self.e(f"s_mov_b64 exec, {(1 << n) - 1}")
            self.vm(f"buffer_load_dword v231, v239, {srd}, {sA} offen")
            self.e("s_mov_b64 exec, -1")

    def touch_oh(self):
        if self.opt["touch"] & 1:
            with self.atomic():
                self.e("s_mov_b64 exec, 0xffff")
                self.vm(f"buffer_load_dword v231, v{self.vTch}, {sWS}, {sOB} offen")
                self.e("s_mov_b64 exec, -1")

    def touch_h(self):
        if self.opt["touch"] & 2:
            self.e("v_lshlrev_b32 v10, 7, v0")
            with self.atomic():
                self.e("s_mov_b64 exec, 0xffff")
                self.vm(f"buffer_load_dword v231, v10, {sWS}, {sHST} offen")
                self.e("s_mov_b64 exec, -1")

    def touch_hh(self, step):
        if self.opt["touch"] & 4:
            self.e("v_lshlrev_b32 v10, 7, v0")
            self.e(f"s_add_u32 {sA}, {sHHB}, {step*56*1024}")
            with self.atomic():
                self.e("s_mov_b64 exec, 0xffffffff")
                self.vm(f"buffer_load_dword v233, v10, {sWS}, {sA} offen")
                self.e("s_mov_b64 exec, -1")

    def wo_setup(self):
        e = self.e
        e(f"s_lshl_b32 {sHB}, {sW}, 17")
        e(f"s_lshl_b32 {sA}, {sC}, 7")
        e(f"s_add_u32 {sHB}, {sHB}, {sA}")
        e(f"s_lshl_b32 {sKI}, {sROT}, 14")

    def wo_prep(self, u):
        e = self.e
        e(f"s_add_u32 m0, {sM0}, {self.SIG[u // 3]*12288 + (u % 3)*1024}")
        if u % 2 == 0:
            e(f"s_add_u32 {sSO}, {sKI}, {sHB}")
        else:
            e(f"s_add_u32 {sKI}, {sKI}, 16384")
            e(f"s_and_b32 {sKI}, {sKI}, 0x1ffff")

    def wo_dma(self, u):
        self.wo_tok = self.vm(f"buffer_load_dwordx4 v{(self.vKs, 238)[u % 2]}, {sWO}, {sSO} offen lds")

    def wo_park(self):
        self.wait(vm=self.wo_tok)
        for u in range(16):
            for cb in range(2):
                r = 8 * (u // 2) + 4 * cb + 2 * (u % 2)
                t = self.ds(f"ds_read_b64_tr_b16 a[{r}:{r+1}], v{self.vT2+cb} offset:{self.SIG[u // 3]*12288 + (u % 3)*1024}")
        return t

    @staticmethod
    def slot_addr(slot):
        return (L_RING if slot[0] == "R" else L_FLEX) + 8192 * slot[1]

    def slot_dep(self, slot):
        i = self.slot_wd.pop(slot, None)
        if i is not None:
            self.wait(ds=self.wdrd[i], gap=3)

    def w3_dma(self, slot):
        ch = len(self.w3slot)
        self.w3slot[ch] = slot
        out = []
        e = self.e
        for o in range(2):
            with self.capture() as lst:
                if o == 0:
                    self.slot_dep(slot)
                    if ch == 16:
                        e(f"v_add_u32 v{self.vW3}, 128, v{self.vW3}")
                        e("v_add_u32 v14, 128, v14")
                    if ch and not self.opt["rot3"]:
                        e(f"s_add_u32 {sW3R}, {sW3B}, {(ch % 16)*32*3584}")
                with self.atomic():
                    e(f"s_add_u32 m0, {sQ}, {self.slot_addr(slot) + o*1024}")
                    if self.opt["rot3"] and o == 1:
                        e(f"s_add_u32 {sSO2}, {sW3R}, {32*3584}")
                    if self.opt.get("x_now3") and ch >= self.opt["x_now3"]:
                        self.w3tok[ch] = None
                    else:
                        self.w3tok[ch] = self.vm(f"buffer_load_dwordx4 v{(self.vW3, 14)[o]}, {sW3}, {sW3R} offen lds")
                if self.opt["rot3"] and o == 1:
                    with self.atomic():
                        e(f"s_cmp_ge_u32 {sSO2}, {sW3E}")
                        e(f"s_cselect_b32 {sW3R}, {sW3B}, {sSO2}")
            out.append(lst)
        return out

    def wd_reg(self, i):
        if i < 16:
            return ("a", 128 + 8 * i)
        if i < 18:
            return ("v", 240 + 8 * (i - 16))
        if i < 26:
            return ("v", 16 + 8 * (i - 18))
        return ("v", 224 + 8 * (i - 26))

    def wd_dma(self, slot):
        i = len(self.wdslot)
        self.wdslot[i] = slot
        out = []
        e = self.e
        assert not self.opt["rot4"]
        for o in range(2):
            with self.capture() as lst:
                if o == 0:
                    self.slot_dep(slot)
                with self.atomic():
                    e(f"s_add_u32 m0, {sQ}, {self.slot_addr(slot) + o*1024}")
                    e(f"s_add_u32 {sRUN}, {sWDB}, {((i % 14) << 17) + (i // 14)*65536 + o*8192}")
                    if self.opt.get("x_nowd"):
                        self.wdtok[i] = None
                    else:
                        self.wdtok[i] = self.vm(f"buffer_load_dwordx4 v{self.vKs4}, {sWD}, {sRUN} offen lds")
            out.append(lst)
        return out

    def wd_read(self, i, gap=0):
        k, r0 = self.wd_reg(i)
        base = self.slot_addr(self.wdslot[i])
        ar = self.vT4
        if base >= 131072:
            ar, base = 236, base - 131072
        assert base + 1024 < 65536
        self.wait(vm=self.wdtok[i], gap=gap)
        for rd in range(2):
            for cb in range(2):
                r = r0 + 4 * cb + 2 * rd
                self.wdrd[i] = self.ds(f"ds_read_b64_tr_b16 {k}[{r}:{r+1}], v{ar+cb} offset:{base + rd*1024}")
                if 18 <= i < 26 and getattr(self, "blk_store", None):
                    self.before.append((self.blk_store[(i - 18) // 2], self.wdrd[i]))
        self.slot_wd[self.wdslot[i]] = i

    def red_addr(self, dst):
        e = self.e
        for u in range(4):
            e(f"s_xor_b32 {sA}, {sW}, {u}")
            e(f"s_lshl_b32 {sA}, {sA}, 12")
            e(f"v_add_u32 v{dst+u}, {sA}, v1")

    def red_write(self, kind, acc, u, ra):
        out = []
        for h in range(4):
            r = acc + 16 * u + 4 * h
            with self.capture() as lst:
                self.redw = self.ds(f"ds_write_b128 v{ra+u}, {kind}[{r}:{r+3}] offset:{L_RED + (u-1)*16384 + h*1024}")
            out.append(lst)
        return out

    def red_read(self, dst, u, ra):
        for h in range(4):
            r = dst + 16 * (u - 1) + 4 * h
            t = self.ds(f"ds_read_b128 v[{r}:{r+3}], v{ra} offset:{L_RED + (u-1)*16384 + h*1024}")
        return t

    def pk_acc(self, a, r, n=16):
        for k in range(0, n, 2):
            self.e(f"v_pk_add_f32 v[{a+k}:{a+k+1}], v[{a+k}:{a+k+1}], v[{r+k}:{r+k+1}]")

    def unpack_res(self, X):
        for d in range(8):
            self.e(f"v_lshlrev_b32 v{X+2*d}, 16, v{2+d}")
            self.e(f"v_and_b32 v{X+2*d+1}, 0xffff0000, v{2+d}")

    def p2(self, early, behind):
        e = self.e
        ACC, RL, RA, X = 16, 80, 128, 132
        e(f"s_lshl_b32 {sB}, {sT}, 6")
        e(f"s_lshl_b32 {sCc}, {sW}, 3")
        e(f"s_add_u32 {sB}, {sB}, {sCc}")
        e(f"s_lshl_b32 {sB}, {sB}, 10")
        e(f"s_lshl_b32 {sCc}, {sTB}, 15")
        e(f"s_add_u32 {sH0}, {sB}, {sCc}")
        e(f"s_xor_b32 {sH1}, {sH0}, 32768")
        e(f"s_lshl_b32 {sKI}, {sROT}, 10")
        ot = {}

        def load(j):
            r = 64 + 4 * j
            e(f"s_add_u32 {sCc}, {sKI}, {(sH1, sH0)[j // 8]}")
            ot[j] = self.vm(f"buffer_load_dwordx4 a[{r}:{r+3}], v1, {sWS}, {sCc} offen sc1")
            e(f"s_add_u32 {sKI}, {sKI}, 1024")
            e(f"s_and_b32 {sKI}, {sKI}, 0x1fff")
        LA = self.opt["la2"]
        for j in range(LA):
            load(j)
        self.red_addr(RA)
        self.unpack_res(X)
        for lst in early:
            self.emit(lst)
        ex = [(2 * (j - LA), self.cap(load, j)) for j in range(LA, 16)]
        n = 2 * (16 - LA)
        for lst in behind:
            ex.append((n, lst))
            n += 1
        for k, lst in enumerate(self.red_write("v", ACC, 2, RA) + self.red_write("v", ACC, 3, RA)):
            ex.append((18 + (3 * k) // 2, lst))
        w23 = self.redw
        ex = [ex]
        slots = []
        for j in range(16):
            tl, i = 1 - j // 8, j % 8
            for cb in range(2):
                a = ACC + 32 * tl + 16 * cb
                c = "0" if i == 0 else f"v[{a}:{a+15}]"
                pre = self.cap(self.wait, vm=ot[j]) if cb == 0 else []
                m = self.cap(e, f"v_mfma_f32_32x32x16_bf16 v[{a}:{a+15}], a[{8*i+4*cb}:{8*i+4*cb+3}], a[{64+4*j}:{67+4*j}], {c}")[0]
                slots.append(dict(pre=pre, mfma=m))
        for u in pack(self, slots, ex, self.opt["budget2"], self.rep)[0]:
            self.emit(u)
        self.stamp("p2mfma")
        self.wait(ds=w23)
        e("s_barrier")
        t2 = self.red_read(RL, 2, RA)
        t3 = self.red_read(RL, 3, RA)
        for lst in self.red_write("v", ACC, 1, RA):
            self.emit(lst)
        self.pk_acc(ACC, X)
        self.wait(ds=t2)
        self.pk_acc(ACC, RL + 16)
        self.wait(ds=self.redw)
        e("s_barrier")
        t1 = self.red_read(RL, 1, RA)
        self.pk_acc(ACC, RL + 32)
        self.wait(ds=t1)
        for h in range(2):
            self.pk_acc(ACC + 8 * h, RL + 8 * h, 8)
            for k in range(4):
                e(f"v_cvt_pk_bf16_f32 v{2+4*h+k}, v{ACC+8*h+2*k}, v{ACC+8*h+2*k+1}")
            self.hstore("buffer_store_dwordx4", f"v[{2+4*h}:{5+4*h}]", "v1", sHST, f"offset:{1024*h}", wt=not self.opt["touch"] & 2)

    def p2_stats(self):
        e = self.e
        S = 132
        e(f"s_mov_b32 {sB}, {ONES}")
        for k in range(8):
            e(f"v_dot2_f32_bf16 v{S}, v{2+k}, {sB}, {'0' if k == 0 else f'v{S}'}")
            e(f"v_dot2_f32_bf16 v{S+1}, v{2+k}, v{2+k}, {'0' if k == 0 else f'v{S+1}'}")
        e("v_and_b32 v10, 15, v0")
        e("v_lshlrev_b32 v10, 4, v10")
        e(f"v_lshrrev_b32 v{S+2}, 4, v0")
        e(f"v_lshl_add_u32 v10, v{S+2}, 2, v10")
        e(f"s_lshl_b32 {sA}, {sT}, 1")
        e(f"s_add_u32 {sA}, {sA}, {sTB}")
        e(f"s_lshl_b32 {sA}, {sA}, 12")
        e(f"s_add_u32 s13, {sA}, {WS_ST}")
        e(f"v_permlane32_swap_b32 v{S}, v{S+1}")
        e(f"s_lshl_b32 {sB}, {sC}, 1")
        e(f"s_and_b32 {sA}, {sW}, 1")
        e(f"s_add_u32 {sB}, {sB}, {sA}")
        e(f"s_lshl_b32 {sB}, {sB}, 8")
        e(f"s_add_u32 {sB}, {sB}, s13")
        e(f"v_add_f32 v{S}, v{S}, v{S+1}")
        self.h_tok = self.hstore("buffer_store_dword", f"v{S}", "v10", sB, wt=True)

    def st_load(self, T, soff):
        for q in range(4):
            t = self.vm(f"buffer_load_dwordx4 v[{T+4*q}:{T+4*q+3}], v1, {sWS}, {soff} offen offset:{1024*q} sc1")
        return t

    def st_sum(self, T, tok, gap=0):
        e = self.e
        self.wait(vm=tok, gap=gap)
        for w_ in (8, 4):
            for q in range(w_):
                e(f"v_add_f32 v{T+q}, v{T+q}, v{T+w_+q}")
        e(f"v_permlane32_swap_b32 v{T}, v{T+2}")
        e(f"v_permlane32_swap_b32 v{T+1}, v{T+3}")
        e(f"v_add_f32 v{T}, v{T}, v{T+2}")
        e(f"v_add_f32 v{T+1}, v{T+1}, v{T+3}")
        with self.atomic():
            e("s_nop 1")
            e(f"v_permlane16_swap_b32 v{T}, v{T+1}")
        e(f"v_add_f32 v{T}, v{T}, v{T+1}")
        e(f"v_mul_f32 v{T}, {f2u(1.0/512)}, v{T}")
        e(f"v_mov_b32 v{T+1}, v{T}")
        with self.atomic():
            e("s_nop 1")
            e(f"v_permlane32_swap_b32 v{T}, v{T+1}")
        e(f"v_fma_f32 v{T+1}, -v{T}, v{T}, v{T+1}")
        e(f"v_max_f32 v{T+1}, 0, v{T+1}")
        e(f"v_add_f32 v{T+1}, {f2u(1e-5)}, v{T+1}")

    def p3(self):
        e = self.e
        o = self.opt
        ACC, WFB, CSR, BAR = (16, 80), 144, 192, o["bar"]
        e(f"s_lshl_b32 {sHB}, {sG}, 2")
        e(f"s_add_u32 {sHB}, {sHB}, {sW}")
        e(f"s_lshl_b32 {sKI}, {sHB}, 12")
        e(f"s_add_u32 {sKI}, {sKI}, {WS_ST}")
        e(f"s_lshl_b32 {sHB}, {sHB}, 15")
        e(f"s_add_u32 {sHB}, {sHB}, {WS_H}")
        e(f"s_mul_i32 {sM0b}, {sROT}, {4096 if o['rot3'] else 0}")
        ht = {}

        def hload(t):
            if t % 4 == 0:
                e(f"s_add_u32 {sM0}, {sHB}, {sM0b if o['rot3'] else t*1024}")
            ht[t] = self.vm(f"buffer_load_dwordx4 a[{4*t}:{4*t+3}], v1, {sWS}, {sM0} offen offset:{(t % 4)*1024} sc1")
            if t % 4 == 0 and o["rot3"]:
                e(f"s_add_u32 {sM0b}, {sM0b}, 4096")
                e(f"s_and_b32 {sM0b}, {sM0b}, 0x7fff")
        HLA = o["hla"]
        for t in range(HLA):
            hload(t)
        ex = [((t - HLA) * o["hpace"], self.cap(hload, t)) for t in range(HLA, 32)]
        exa, exc, exb, exd = self.p3_extras(ACC, CSR)
        ex = [ex + exa, exc, exb, exd]
        rtok = {}

        def reads(t):
            ch, ks = t // 2, t % 2
            kind, slot = self.w3slot[ch]
            assert kind == "R"
            for b in range(4):
                for rd in range(2):
                    r = WFB + 16 * (t % 3) + 4 * b + 2 * rd
                    base = self.vT3 + b + (4 if slot >= 8 else 0)
                    rtok[t] = self.ds(f"ds_read_b64_tr_b16 v[{r}:{r+1}], v{base} offset:{(slot % 8)*8192 + ks*2048 + rd*1024}")
        reads(0)
        reads(1)
        seen = set(self.w3pre)
        slots = []
        cst = {}
        for t in range(64):
            step, tk = t // 32, t % 32
            rd = self.cap(reads, t + 2) if t + 2 < 64 else None
            for b in range(4):
                n = 4 * t + b
                s = {}
                if b == 0:
                    s["pre"] = self.cap(self.wait, vm=ht[tk] if step == 0 else None, ds=rtok[t])
                    if rd:
                        assert (t + 2) // 2 in seen or n % BAR == 0, t
                        s["reads"], s["due"] = rd, 4
                a = ACC[step] + 16 * b
                w = WFB + 16 * (t % 3) + 4 * b
                c = "0" if tk == 0 else f"v[{a}:{a+15}]"
                s["mfma"] = self.cap(e, f"v_mfma_f32_32x32x16_bf16 v[{a}:{a+15}], v[{w}:{w+3}], a[{4*tk}:{4*tk+3}], {c}")[0]
                if n == 128:
                    self.before.append((self.st_last, s["mfma"]))
                with self.capture() as post:
                    if b == 0:
                        cc = "0" if tk == 0 else f"v[{self.vCa}:{self.vCa+3}]"
                        s["tail"] = self.cap(e, f"v_mfma_f32_16x16x32_bf16 v[{self.vCa}:{self.vCa+3}], v[{w}:{w+3}], v[{self.vSel}:{self.vSel+3}], {cc}")
                    if tk == 31 and b in (2, 3):
                        lst = self.cap(self.cs_pack, step) if b == 2 else csrest
                        k = 8 if b == 2 else len(lst)
                        self.emit(lst[:k])
                        csrest = lst[k:]
                    NC = o["n_corr"]
                    if (n % BAR == 0 and n > 0) or n == NC - 4:
                        chs = [ch for ch in range(32) if ch not in seen and 8 * (ch - 1) < n + BAR]
                        self.wait(vm=[self.w3tok[ch] for ch in chs], ds=self.cs_w if n == NC - 4 else None)
                        seen.update(chs)
                        e("s_barrier")
                    if NC - 4 <= n < NC - 2:
                        cst[n - NC + 4] = self.cs_read(0, n - NC + 4, 192 + 4 * (n - NC + 4))
                    if NC <= n < NC + 4:
                        bb = n - NC
                        with self.capture() as tl:
                            self.wait(ds=cst[bb])
                            self.corr_mfma(ACC[0], bb, 192 + 4 * (bb % 2))
                            if bb < 2:
                                cst[bb + 2] = self.cs_read(0, bb + 2, 192 + 4 * bb)
                        s["tail"] = s.get("tail", []) + tl
                    if n in (31, 63, 95, 127, 191):
                        self.stamp(f"p3_{n+1}")
                s["post"] = post
                slots.append(s)
        self.p3_left = pack(self, slots, ex, o["budget"], self.rep)
        self.stamp("p3mfma")

    def cs_pack(self, step):
        e = self.e
        C, T = self.vCa, 200
        for r in range(4):
            e(f"v_cvt_pk_bf16_f32 v{T+r}, v{C+r}, v{C+r}")
        for r in range(4):
            e(f"v_lshlrev_b32 v{T+r}, 16, v{T+r}")
        for r in range(4):
            e(f"v_sub_f32 v{T+r}, v{C+r}, v{T+r}")
        for r in range(4):
            e(f"v_cvt_pk_bf16_f32 v{T+r}, v{C+r}, v{T+r}")
        with self.atomic():
            e("s_mov_b32 exec_lo, 0x00030003")
            e("s_mov_b32 exec_hi, 0x00030003")
            self.cs_w = self.ds(f"ds_write_b128 v{self.vCsw}, v[{T}:{T+3}] offset:{L_CS + 512*step}")
            e("s_mov_b64 exec, -1")

    def cs_read(self, step, b, reg):
        if b:
            self.e(f"v_xor_b32 v10, {64*b}, v{self.vCsx}")
        o = (L_CS + 512 * step) // 4
        base = 10 if b else self.vCsx
        return self.ds(f"ds_read2st64_b32 v[{reg}:{reg+1}], v{base} offset0:{o // 64} offset1:{o // 64}")

    def corr_mfma(self, acc, b, reg):
        a = acc + 16 * b
        self.e(f"v_mfma_f32_32x32x16_bf16 v[{a}:{a+15}], v[{reg}:{reg+3}], v[{self.vMB}:{self.vMB+3}], v[{a}:{a+15}]")

    def hh_epi(self, acc, step, pk=False):
        e = self.e
        out = []
        for b in range(4):
            a = acc + 16 * b
            with self.capture() as lst:
                e(f"s_xor_b32 {sD}, {sW}, {b}")
                e(f"s_lshl_b32 {sD}, {sD}, 10")
                e(f"s_add_u32 {sD}, {sD}, {sHHB}")
                if pk:
                    for r in range(0, 8, 2):
                        e(f"v_pk_mul_f32 v[{a+r}:{a+r+1}], v[{a+r}:{a+r+1}], v[{a+8+r}:{a+9+r}]")
                else:
                    for r in range(8):
                        e(f"v_mul_f32 v{a+r}, v{a+r}, v{a+8+r}")
                for r in range(4):
                    e(f"v_cvt_pk_bf16_f32 v{a+8+r}, v{a+2*r}, v{a+2*r+1}")
                self.hh_tok = self.hstore("buffer_store_dwordx4", f"v[{a+8}:{a+11}]", "v1", sD, wt=not self.opt["touch"] & 4)
                if b == 3 and step == 0:
                    e(f"s_add_u32 {sHHB}, {sHHB}, {56*1024}")
            out.append(lst)
        return out

    def p3_extras(self, ACC, CSR):
        e = self.e
        o = self.opt
        ex = []
        BAR = o["bar"]
        TM, MB = 80, self.vMB
        st = {}

        def st_load():
            st["s"] = self.st_load(TM, sKI)

        def st_fin():
            self.st_sum(TM, st["s"], 30)
            e(f"v_rcp_f32 v{TM+1}, v{TM+1}")
            e(f"s_lshl_b32 {sA}, {sW}, 7")
            e(f"v_lshl_add_u32 v{TM+2}, v0, 2, {sA}")
            with self.atomic():
                e("s_mov_b32 exec_hi, 0")
                self.ds(f"ds_write_b32 v{TM+2}, v{TM+1} offset:{L_R2}")
                e("s_mov_b32 exec_hi, -1")
            e(f"v_sub_f32 v{TM}, 0, v{TM}")
            e(f"v_cvt_pk_bf16_f32 v{MB}, v{TM}, v{TM}")
            e(f"v_lshlrev_b32 v{TM+1}, 16, v{MB}")
            e(f"v_sub_f32 v{TM}, v{TM}, v{TM+1}")
            e(f"v_cvt_pk_bf16_f32 v{MB+1}, v{TM}, v{TM}")
            e(f"v_mov_b32 v{MB+2}, 0")
            e(f"v_mov_b32 v{MB+3}, 0")
            with self.atomic():
                e("s_mov_b32 exec_lo, 0")
                e(f"v_mov_b32 v{MB}, 0")
                e(f"v_mov_b32 v{MB+1}, 0")
                e("s_mov_b32 exec_lo, -1")
        ex.append((o["n_touch0"], self.cap(self.touch_hh, 0)))
        ex.append((o["n_touch1"], self.cap(self.touch_hh, 1)))
        ex.append((o["n_st"], self.cap(st_load)))
        ex.append((o["n_st"] + 30, self.cap(st_fin)))
        self.st_last = ex[-1][1][-1]
        span, NE = o["epi_span"], o["n_corr"] + 5
        self.blk_store = {}
        for b, lst in enumerate(self.hh_epi(ACC[0], 0)):
            k = len(lst)
            self.blk_store[b] = [i for i in lst if i.is_store][-1]
            for q in range(0, k, 2):
                ex.append((NE + b * span + (q * span) // k, lst[q:q + 2]))
        blk_done = [NE + (b + 1) * span + 3 for b in range(4)]
        n1 = blk_done[3]
        hh1 = self.hh_tok

        def pub():
            self.wait(ds=None, vm=None)
            self.stamp("e_pre")
            self.wait(vm=hh1, gap=o["pub_delay"])
            self.stamp("e_ack")
            self.flag_set(F3, 1)
        npub = n1 + o["pub_delay"]
        exc = [(npub, self.cap(pub))]
        n = npub + o["e_poll"]
        exc.append((n, self.cap(self.p4_poll_e)))
        exc.append((n + o["e_check"], self.cap(self.p4_check_e)))
        nn = n + o["e_check"] + 1
        while nn < 254 and len(self.lt) < o["la4"]:
            exc.append((nn, self.cap(self.p4_load)))
            nn += 2
        exa = []
        exd = []
        free = {("R", i): 0 for i in range(16)}
        free.update({("F", i): 0 for i in range(3)})
        for ch, sl in self.w3slot.items():
            free[sl] = -(-8 * (ch + 1) // BAR) * BAR
        INF = 10 ** 6
        self.p4_parks = []
        lastpark = o["n_dma0"]
        for i, sl in self.wdslot.items():
            if i not in self.wdrd:
                exd.append((lastpark, self.cap(self.wd_read, i)))
                lastpark += 3
                free[sl] = lastpark
        lead, D = o["lead"], o["park_d"]
        n = o["n_dma0"]
        log = []
        while n + o["pace"] < 254:
            pc = o["pace"] if n >= o["n_fast"] else o["pace0"]
            nc, nw = len(self.w3slot), len(self.wdslot)
            rfree = sorted((k for k, v in free.items() if k[0] == "R" and v <= n), key=lambda k: (k[1] < 4, free[k]))
            afree = sorted((k for k, v in free.items() if v <= n and (k[0] == "F" or k[1] < 4)), key=lambda k: (k[0] == "R", free[k]))
            dl = ((8 * (nc - 1)) // BAR) * BAR if nc < 32 else INF
            want_wd = nw < o["wd_p3"] and afree and (len(rfree) > 1 or afree[0][0] == "F" or nc >= 32)
            if nc < 32 and rfree and (dl - n <= lead or not want_wd):
                sl = rfree[0]
                for q, lst in enumerate(self.w3_dma(sl)):
                    exa.append((n + q * pc, lst))
                log.append((n, "c", nc, sl[1], dl))
                free[sl] = -(-8 * (nc + 1) // BAR) * BAR
                n += 2 * pc
            elif want_wd:
                sl = afree[0]
                for q, lst in enumerate(self.wd_dma(sl)):
                    exd.append((n + q * pc, lst))
                log.append((n, "d", nw, sl))
                p = max(n + pc + D, lastpark)
                if nw >= 18:
                    p = max(p, blk_done[(nw - 18) // 2]) if nw < 26 else INF
                if p + 4 < 256:
                    exd.append((p, self.cap(self.wd_read, nw, D)))
                    lastpark = p + 3
                    free[sl] = lastpark
                else:
                    self.p4_parks.append(nw)
                    free[sl] = INF
                n += 2 * pc
            else:
                n += 1
        assert len(self.w3slot) == 32
        if o.get("verbose"):
            print("log", log, "parks", self.p4_parks)
        self.p4_free = [k for k, v in free.items() if v <= 256 - BAR and (k[0] == "F" or k[1] < 4)]
        return exa, exc, ex, exd

    def p4_init(self):
        self.order = []
        for i in range(14):
            self.order += [(i, 1), (i, 0)]
        for i in range(14, 22):
            self.order += [(i, 1), (i, 0)]
        self.order += [(i, 1) for i in range(22, 28)] + [(i, 0) for i in range(22, 28)]
        self.lt = {}

    def p4_poll_e(self):
        e = self.e
        e(f"s_mul_i32 {sHB}, {sT}, 224")
        e(f"s_add_u32 {sHB}, {sHB}, {sW}")
        e(f"s_lshl_b32 {sHB}, {sHB}, 10")
        e(f"s_add_u32 {sHB}, {sHB}, {WS_HH}")
        e(f"s_mul_i32 {sM0b}, {sTB}, {112*1024}")
        e(f"s_add_u32 {sH0}, {sHB}, {sM0b}")
        e(f"s_sub_u32 {sH1}, {sHB}, {sM0b}")
        e(f"s_add_u32 {sH1}, {sH1}, {112*1024}")
        self.pe_tok = self.poll_issue(self.vP3, F3)

    def p4_check_e(self):
        self.stamp("e_chk0")
        self.poll_check(self.pe_tok, self.vP3, F3, 1, "e")
        self.stamp("e_chk1")

    def p4_load(self):
        e = self.e
        j = len(self.lt)
        i, tl = self.order[j]
        r = 4 * (j % 16)
        if not self.opt["rot4"]:
            e(f"s_add_u32 {sM0b}, {(sH0, sH1)[tl]}, {4096*i}")
            self.lt[j] = self.vm(f"buffer_load_dwordx4 a[{r}:{r+3}], v1, {sWS}, {sM0b} offen sc1")
            return
        if j == 28:
            e(f"s_add_u32 {sH0}, {sH0}, {56*1024}")
            e(f"s_add_u32 {sH1}, {sH1}, {56*1024}")
        if j == 44:
            e(f"s_mov_b32 {sKI}, {sRUNH}")
        if j == 50:
            e(f"s_mov_b32 {sRUNH}, {sKI}")
        e(f"s_add_u32 {sM0b}, {(sH0, sH1)[tl]}, {sRUNH}")
        self.lt[j] = self.vm(f"buffer_load_dwordx4 a[{r}:{r+3}], v1, {sWS}, {sM0b} offen sc1")
        if j >= 44 or tl == 0:
            e(f"s_add_u32 {sRUNH}, {sRUNH}, 4096")
            with self.atomic():
                e(f"s_cmp_ge_u32 {sRUNH}, {14*4096}")
                e(f"s_cselect_b32 {sRUNH}, 0, {sRUNH}")

    def p4(self, epi, busy):
        e = self.e
        o = self.opt
        ACC, RA, RL, X, OWN = 64, 144, 148, 96, 80
        order, lt = self.order, self.lt
        LA = o["la4"]
        while len(lt) < LA:
            self.p4_load()
        for lst in epi:
            self.emit(lst)
        self.stamp("p4start")
        ex, exd = [], [(o["n4_left"], u) for u in self.d_left]
        n = o["n4_left"] + len(self.d_left) // 3
        slots_free = [(0, sl) for sl in self.p4_free]
        for i in self.p4_parks:
            if i < 14 and 4 * i <= n + 4:
                self.wd_read(i)
            else:
                exd.append((n, self.cap(self.wd_read, i, o["park_g4"])))
                n += 2
            slots_free.append((n + 1, self.wdslot[i]))
        nd = o["n4_dma0"]
        while len(self.wdslot) < 28:
            i = len(self.wdslot)
            slots_free.sort(key=lambda x: x[0])
            nf, sl = slots_free.pop(0)
            nd = max(nd, nf)
            for q, lst in enumerate(self.wd_dma(sl)):
                exd.append((nd + q, lst))
            np_ = max(nd + o["park_d4"], n)
            exd.append((np_, self.cap(self.wd_read, i, o["park_g4"])))
            slots_free.append((np_ + 2, sl))
            n = np_ + 2
            nd += o["pace4"]
        st = {}

        def pub():
            self.stamp("l_pre")
            self.wait(vm=self.hh_tok)
            self.stamp("l_ack")
            self.flag_set(F3, 2)

        def r2_load():
            if busy:
                e(f"s_and_b32 {sA}, {sM}, 8")
                e(f"s_lshl_b32 {sA}, {sA}, 5")
                e(f"s_lshl_b32 {sB}, {sTB}, 7")
                e(f"s_add_u32 {sA}, {sA}, {sB}")
                e("v_and_b32 v10, 31, v0")
                e(f"v_lshl_add_u32 v10, v10, 2, {sA}")
                st["r"] = self.ds(f"ds_read_b32 v{self.vR2}, v10 offset:{L_R2}")
            else:
                st["r"] = self.st_load(X, "s13")

        def r2_fin():
            if not busy:
                self.st_sum(X, st["r"])
                e(f"v_rcp_f32 v{self.vR2}, v{X+1}")
            self.red_addr(RA)
            e("v_and_b32 v10, 31, v0")
            e(f"v_lshl_add_u32 v10, v10, 10, v{self.vCsr}")
            e(f"s_lshl_b32 {sB}, {sT}, 1")
            e(f"s_add_u32 {sB}, {sB}, {sTB}")
            e(f"s_lshl_b32 {sB}, {sB}, 15")
            e(f"s_lshl_b32 {sA}, {sC}, 7")
            e(f"s_add_u32 {sB}, {sB}, {sA}")
            e(f"s_and_b32 {sA}, {sW}, 1")
            e(f"s_lshl_b32 {sA}, {sA}, 6")
            e(f"s_add_u32 {sB}, {sB}, {sA}")
            self.unpack_res(X)
        exb = []
        if busy:
            ex.append((o["n4_pub"], self.cap(pub)))
        if busy:
            exb.append((o["n4_r2"] - 1, self.cap(r2_load)))
        else:
            r2_load()
        npoll = o["n4_late"]

        def lpoll():
            st["p"] = self.poll_issue(self.vP3, F3)

        def lcheck():
            self.stamp("l_chk0")
            self.poll_check(st["p"], self.vP3, F3, 2, "l")
            self.stamp("p4late")
        ex.append((npoll - o["d4_poll"], self.cap(lpoll)))
        ex.append((npoll, self.cap(lcheck)))
        for j in range(len(lt), 56):
            ex.append((max(2 * (j - LA), npoll if j >= 28 else 0), self.cap(self.p4_load)))
        exb.append((o["n4_r2"], self.cap(r2_fin)))
        for k, lst in enumerate(self.red_write("a", ACC, 2, RA) + self.red_write("a", ACC, 3, RA)):
            exb.append((102 + k, lst))
        w23 = self.redw
        slots = []
        first = {0: True, 1: True}
        for j in range(56):
            i, tl = order[j]
            k, w0 = self.wd_reg(i)
            for cb in range(2):
                n = 2 * j + cb
                a = ACC + 32 * tl + 16 * cb
                c = "0" if first[tl] else f"a[{a}:{a+15}]"
                s = dict(mfma=self.cap(e, f"v_mfma_f32_32x32x16_bf16 a[{a}:{a+15}], {k}[{w0+4*cb}:{w0+4*cb+3}], a[{4*(j % 16)}:{4*(j % 16)+3}], {c}")[0])
                if cb == 0:
                    s["pre"] = self.cap(self.wait, vm=lt[j], ds=self.wdrd[i])
                if n == 98:
                    s["post"] = self.cap(e, "s_barrier")
                slots.append(s)
            first[tl] = False
        left = pack(self, slots, [ex, exd, exb], o["budget4"], self.rep)
        assert not any(left)
        self.stamp("p4mfma")
        self.wait(ds=w23)
        e("s_barrier")
        t2 = self.red_read(RL, 2, RA)
        t3 = self.red_read(RL, 3, RA)
        for lst in self.red_write("a", ACC, 1, RA):
            self.emit(lst)
        for r in range(16):
            e(f"v_accvgpr_read_b32 v{OWN+r}, a{ACC+r}")
        self.wait(ds=t3)
        self.pk_acc(RL + 16, RL + 32)
        self.wait(ds=self.redw)
        e("s_barrier")
        t1 = self.red_read(RL, 1, RA)
        self.pk_acc(OWN, RL + 16)
        self.wait(ds=t1)
        for h in range(2):
            a = OWN + 8 * h
            self.pk_acc(a, RL + 8 * h, 8)
            for k in range(4):
                e(f"v_pk_fma_f32 v[{a+2*k}:{a+2*k+1}], v[{a+2*k}:{a+2*k+1}], v[{self.vR2}:{self.vR2+1}], v[{X+8*h+2*k}:{X+8*h+2*k+1}] op_sel_hi:[1,0,1]")
            ob = 112 + 4 * h
            for k in range(4):
                e(f"v_cvt_pk_bf16_f32 v{ob+k}, v{a+2*k}, v{a+2*k+1}")
            e(f"v_permlane32_swap_b32 v{ob}, v{ob+2}")
            e(f"v_permlane32_swap_b32 v{ob+1}, v{ob+3}")
            self.vm(f"buffer_store_dwordx4 v[{ob}:{ob+3}], v10, {sOUT}, {sB} offen offset:{32*h}")

    def build(self):
        e = self.e
        o = self.opt
        self.w3tok, self.w3slot, self.slot_wd = {}, {}, {}
        self.wdtok, self.wdrd, self.wdslot = {}, {}, {}
        self.p4_init()

        nds = min(4, o["g1d"] + o["g2d"] + o["g3d"])
        c_slots = [("R", i) for i in range(6, 16 - nds)]
        d_slots = [("R", i) for i in range(16 - nds, 16)]
        pending = []

        def window(nc, nd):
            out = []
            for k in range(max(nc, nd)):
                if k < nd:
                    pending.append(len(self.wdslot))
                    out += self.wd_dma(d_slots.pop(0))
                if k < nc:
                    out += self.w3_dma(c_slots.pop(0))
            return out

        def parks():
            out = []
            for i in list(pending):
                out.append(self.cap(self.wd_read, i))
                d_slots.append(self.wdslot[i])
                pending.remove(i)
            return out
        self.entry()
        self.stamp("kernarg")
        self.p1()
        self.wait(ds="all")
        e("s_barrier")
        wd_early = o["g1d"] + o["g2d"] + o["g3d"] > 0
        if wd_early:
            self.late_wd()
        g1 = [self.cap(self.wo_dma, 15)] + window(o["g1c"], o["g1d"])
        g1.append(self.cap(self.touch_h))
        if o["s_twd"] == 17:
            g1.insert(1, self.cap(self.touch_w, sWD, 14))
        if o["t3d"] == 2:
            g1.insert(1, self.cap(self.touch3, sWD, 14))
        self.p1_epi(g1)
        self.stamp("attn")
        pk1 = parks()
        d1 = [d_slots.pop() for _ in pk1]
        if o["s_twd"] == 16:
            self.touch_w(sWD, 14)
        if o["t3d"] == 0:
            self.touch3(sWD, 14)
        for lst in window(o["g2c"], o["g2d"]):
            self.emit(lst)
        t = self.wo_park()
        self.wait(vm=self.o_tok)
        self.flag_set(F1, 1)
        self.stamp("opub")
        pt = self.poll_issue(self.vP1, F1)
        self.late_p2()
        self.late_p3()
        if not wd_early:
            self.late_wd()
        for lst in pk1:
            self.emit(lst)
        d_slots += d1
        self.wait(ds=t)
        e("s_barrier")
        self.poll_check(pt, self.vP1, F1, 1, "o")
        self.stamp("oseen")
        pk2 = parks()
        self.p2(pk2, window(o["g3c"], o["g3d"]))
        self.p2_stats()
        self.stamp("p2done")
        pk3 = parks()
        c_slots += [("R", 4), ("R", 5), ("R", 3)]
        d_slots = [("F", 2), ("R", 0), ("R", 1), ("R", 2)]
        for lst in window(o["g4c"], o["g4d"]):
            self.emit(lst)
        if o["t3d"] == 1:
            self.touch3(sWD, 14)
        self.wait(vm=self.h_tok)
        self.flag_set(F2, 1)
        self.stamp("hpub")
        for lst in pk3:
            self.emit(lst)
        npre = len(self.wdslot)
        pre_state = (dict(self.wdtok), dict(self.wdrd), dict(self.wdslot), dict(self.slot_wd))
        idle = self.label("idle")
        e(f"s_cmp_ge_u32 {sM}, 14")
        e(f"s_cbranch_scc1 {idle}")
        self.mark("save", "idle")
        pt = self.poll_issue(self.vP2, F2)
        self.late_b()
        self.wait(vm=pt)
        e("s_barrier")
        self.w3pre = set(self.w3slot)
        self.poll_check(pt, self.vP2, F2, 1, "h")
        self.stamp("hseen")
        self.p3()
        for u in self.p3_left[2] + self.p3_left[1] + self.p3_left[0]:
            self.emit(u)
        self.d_left = self.p3_left[3]
        self.wait(ds=self.cs_w)
        e("s_barrier")
        ct = [self.cs_read(1, b, (192, 196, 144, 148)[b]) for b in range(4)]
        for b in range(4):
            self.wait(ds=ct[b])
            self.corr_mfma(80, b, (192, 196, 144, 148)[b])
        self.p4(self.hh_epi(80, 1, pk=True), True)
        self.stamp("end")
        if o.get("dbgdur"):
            e("s_waitcnt vmcnt(0)")
            e("s_memrealtime s[92:93]")
            e("s_memtime s[90:91]")
            e("s_waitcnt lgkmcnt(0)")
            e("v_mov_b32 v14, s92")
            e("v_writelane_b32 v14, s90, 1")
            e("v_sub_u32 v14, v14, v15")
            e(f"s_lshl_b32 {sA}, s2, 3")
            e(f"v_lshl_add_u32 v10, v0, 2, {sA}")
            e(f"s_cmp_lt_u32 s2, 8")
            e(f"s_cselect_b32 {sA}, {sW}, 1")
            e(f"s_cmp_eq_u32 {sA}, 0")
            e("s_cselect_b64 exec, 3, 0")
            e(f"buffer_store_dword v14, v10, {sDBG}, 0 offen")
        self.stamp_flush()
        e("s_endpgm")
        e(f"{idle}:")
        self.mark("restore", "idle")
        stamps = o.get("stamps")
        o["stamps"] = False
        self.wdtok, self.wdrd, self.wdslot, self.slot_wd = pre_state
        self.blk_store = None
        self.p4_init()
        for i in range(npre):
            if i not in self.wdrd:
                self.wd_read(i)
        self.wait(vm="all", ds="all")
        e("s_barrier")
        for i in range(npre, 34):
            if i < 28:
                for lst in self.wd_dma([("F", 0), ("F", 1), ("F", 2), ("R", 0), ("R", 1), ("R", 2), ("R", 3)][i % 7]):
                    self.emit(lst)
            if i - 6 >= npre:
                self.wd_read(i - 6)
        self.p4_poll_e()
        self.p4_check_e()
        self.p4_parks, self.p4_free, self.d_left = [], [], []
        self.p4([], False)
        o["stamps"] = stamps
        self.stamp_flush()
        e("L_exit:")
        e("s_endpgm")
        tails, self.tail = self.tail, []
        for f in tails:
            f()
        e("L_code_end:")
        e("s_endpgm")
        return self.finish()


HEADER = """; Kernarg layout for this problem (80 bytes, ptrs only, base s[0:1]):
;   0 A_x  8 A_wqkv  16 A_wo  24 B_x (unused)  32 B_w_gate  40 B_w_up  48 B_w_down  56 d_out  64 d_debug  72 d_ws
; @launch grid=(256,1,1) block=(256,1,1) lds={lds}
.amdgcn_target "amdgcn-amd-amdhsa--gfx950"
.text
.globl {n}_kernel
.p2align 8
.type {n}_kernel,@function
{n}_kernel:
"""
FOOTER = """.section .rodata,"a"
.p2align 6
.amdhsa_kernel {n}_kernel
  .amdhsa_next_free_vgpr 512
  .amdhsa_next_free_sgpr 102
  .amdhsa_accum_offset 256
  .amdhsa_group_segment_fixed_size 0
  .amdhsa_kernarg_size 80
  .amdhsa_user_sgpr_count 2
  .amdhsa_user_sgpr_kernarg_segment_ptr 1
  .amdhsa_system_sgpr_workgroup_id_x 1
.end_amdhsa_kernel
"""

DEFAULT = dict(fast=True, map="xcd", stamps=False, rot=1, rotx=1, rotq=0, dgaps='1,5,9', addr2_early=0, codepf=1, s_hel=3, touch=0, st_wt=0, t3q=1, t3o=6, t3d=2, wpos='1,3,4,6,6', s_touch=9, s_two=-1, s_twd=12,
               g1c=2, g1d=0, g2c=2, g2d=2, g3c=2, g3d=2, g4c=3, g4d=2, la2=9, bar=16, budget=6, budget2=7, budget4=6, rot3=1, rot4=0, hla=8, hpace=3, n_st=40,
               epi_span=7, n_corr=135, pub_delay=30, n_touch0=40, n_touch1=130, e_poll=16, e_check=14, la4=12,
               n_dma0=2, pace0=5, pace=2, n_fast=64, lead=72, park_d=40, wd_p3=28,
               n4_left=0, n4_dma0=17, park_d4=20, park_g4=14, pace4=2, n4_pub=16, n4_r2=30, n4_late=40, d4_poll=8)


def generate(**kw):
    opt = dict(DEFAULT)
    opt.update(kw)
    for k in ("dgaps", "wpos"):
        opt[k] = [int(x) for x in str(opt[k]).split(",") if x not in ("", "-1")]
    g = Gen(opt)
    body = g.build()
    return HEADER.format(n=NAME, lds=LDS_BYTES) + body + FOOTER.format(n=NAME), opt, g


if __name__ == "__main__":
    kw = {}
    out = f"cdna_kernels/{NAME}.s"
    for a in sys.argv[1:]:
        k, v = a.split("=")
        if k == "out":
            out = v
        else:
            kw[k] = int(v) if v.lstrip("-").isdigit() else v
    txt, opt, g = generate(**kw)
    open(out, "w").write(txt)
    print("wrote", out, "instrs", len(g.final), "nops", g.nops, "pack (max delay, left):", g.rep)
```
